```python
import torch

def _softmax(x, axis=-1):
    return torch.softmax(x, dim=axis)
def _gelu(x):
    return torch.nn.functional.gelu(x, approximate="tanh")
def _silu(x):
    return torch.nn.functional.silu(x)
def _sigmoid(x):
    return torch.sigmoid(x)
def _layernorm(x, axis=-1, eps=1e-5):
    m = x.mean(dim=axis, keepdim=True)
    v = x.var(dim=axis, keepdim=True, unbiased=False)
    return (x - m) / torch.sqrt(v + eps)
def _scatter_add(tgt, idx, src, axis=0):
    return tgt.clone().index_add_(axis, idx, src)
def _segment_sum(src, seg, n):
    out = torch.zeros((n,) + src.shape[1:], dtype=src.dtype)
    return out.index_add_(0, seg, src)
def _pad(x, pw):
    flat = tuple(v for pair in reversed(pw) for v in pair)
    return torch.nn.functional.pad(x, flat)

kernel_name = 'interleave_layers__linear_kernel_hedgehog__dense_activation_gelu__prompt'

def setup_inputs():

    _w = (lambda a: (lambda t: t.to(torch.bfloat16) if t.is_floating_point() else t)(torch.as_tensor(a)))
    def _A_setup():
        B, S, D, H = 1, 2048, 448, 16
        Dh = D // H
        return {
            "x": _w((lambda *s: torch.randn(*s, dtype=torch.bfloat16) * 0.05)(B, S, D)),
            "wqkv": _w((lambda *s: torch.randn(*s, dtype=torch.bfloat16) * 0.4)(D, 3 * D)),
            "w_phi": _w((lambda *s: torch.randn(*s, dtype=torch.bfloat16) * 0.4)(H, Dh, Dh) * (Dh ** -0.5)),
            "wo": _w((lambda *s: torch.randn(*s, dtype=torch.bfloat16) * 0.05)(D, D)),
        }
    _A_in = _A_setup()

    def _B_setup():
        B, S, D, F = 1, 2048, 448, 1792
        return {
            "x": _w((lambda *s: torch.randn(*s, dtype=torch.bfloat16) * 0.05)(B, S, D)),
            "w1": _w((lambda *s: torch.randn(*s, dtype=torch.bfloat16) * 1.6)(D, F) * (D ** -0.5)),
            "b1": _w((lambda *s: torch.randn(*s, dtype=torch.bfloat16) * 1.6)(F) * 0.01),
            "w2": _w((lambda *s: torch.randn(*s, dtype=torch.bfloat16) * 1.6)(F, D) * (F ** -0.5)),
            "b2": _w((lambda *s: torch.randn(*s, dtype=torch.bfloat16) * 1.6)(D) * 0.01),
        }
    _B_in = _B_setup()

    return {
        "A_x": _A_in["x"],
        "A_wqkv": _A_in["wqkv"],
        "A_w_phi": _A_in["w_phi"],
        "A_wo": _A_in["wo"],
        "B_x": _B_in["x"],
        "B_w1": _B_in["w1"],
        "B_b1": _B_in["b1"],
        "B_w2": _B_in["w2"],
        "B_b2": _B_in["b2"],
    }

def reference(A_x, A_wqkv, A_w_phi, A_wo, B_x, B_w1, B_b1, B_w2, B_b2):
    def _A_ref(x, wqkv, w_phi, wo):
        B, S, D = x.shape
        H = 16; Dh = D // H
        qkv = (lambda x, *d: x.permute(*d))((x @ wqkv).reshape(B, S, 3, H, Dh), 2, 0, 3, 1, 4)
        q, k, v = qkv[0], qkv[1], qkv[2]
        pq = torch.einsum("bhsd,hdf->bhsf", q, w_phi)
        pk = torch.einsum("bhsd,hdf->bhsf", k, w_phi)
        phi_q = torch.concatenate([_softmax(pq, axis=-1), _softmax(-pq, axis=-1)], axis=-1)
        phi_k = torch.concatenate([_softmax(pk, axis=-1), _softmax(-pk, axis=-1)], axis=-1)
        kv = torch.einsum("bhsf,bhsd->bhfd", phi_k, v)
        z  = torch.einsum("bhsf->bhf", phi_k)
        num = torch.einsum("bhqf,bhfd->bhqd", phi_q, kv)
        den = torch.einsum("bhqf,bhf->bhq", phi_q, z)[..., None] + 1e-6
        o = num / den
        return (lambda x, *d: x.permute(*d))(o, 0, 2, 1, 3).reshape(B, S, D) @ wo

    def _B_ref(x, w1, b1, w2, b2):
        h = torch.einsum("bsd,df->bsf", x, w1) + b1
        h = _gelu(h)
        return torch.einsum("bsf,fd->bsd", h, w2) + b2

    x = A_x
    x = x + _A_ref(_layernorm(x, axis=-1), A_wqkv, A_w_phi, A_wo)
    x = x + _B_ref(_layernorm(x, axis=-1), B_w1, B_b1, B_w2, B_b2)
    x = x + _A_ref(_layernorm(x, axis=-1), A_wqkv, A_w_phi, A_wo)
    x = x + _B_ref(_layernorm(x, axis=-1), B_w1, B_b1, B_w2, B_b2)
    return x
```

```python
import re

def parse_regs(op):
    op = op.strip()
    neg = op.startswith('-')
    if neg: op = op[1:]
    if op.startswith('abs(') and op.endswith(')'): op = op[4:-1]
    if op.startswith('|') and op.endswith('|'): op = op[1:-1]
    m = re.fullmatch(r'v(\d+)', op)
    if m: return ('v', {int(m.group(1))})
    m = re.fullmatch(r'v\[(\d+):(\d+)\]', op)
    if m: return ('v', set(range(int(m.group(1)), int(m.group(2))+1)))
    m = re.fullmatch(r's(\d+)', op)
    if m: return ('s', {int(m.group(1))})
    m = re.fullmatch(r's\[(\d+):(\d+)\]', op)
    if m: return ('s', set(range(int(m.group(1)), int(m.group(2))+1)))
    if op == 'vcc': return ('s', {106, 107})
    if op == 'exec': return ('s', {126, 127})
    if op == 'm0': return ('s', {124})
    return (None, set())

TRANS = ('v_exp_f32', 'v_log_f32', 'v_rcp_f32', 'v_rsq_f32', 'v_sqrt_f32', 'v_sin_f32', 'v_cos_f32')

class Ins:
    __slots__ = ('kind', 'vw', 'vr', 'sw', 'sr', 'pos', 'passes', 'srcc', 'dst_exact', 'wide')

class Emitter:
    def __init__(self):
        self.lines = []
        self.pos = 0
        self.hist = []
        self.vm = []
        self.lg = []
        self.smem = 0
        self.max_v = -1
        self.max_s = -1
        self.ninstr = 0

    def raw(self, text):
        self.lines.append(text)
    def comment(self, t):
        self.lines.append('    ; ' + t)
    def label(self, name):
        self.fence()
        self.lines.append(name + ':')
    def nop(self, n):
        while n > 0:
            k = min(n, 16)
            self.lines.append('    s_nop %d' % (k-1))
            self.pos += k
            n -= k
    def fence(self):
        need = 0
        for h in self.hist:
            need = max(need, 20 - (self.pos - h.pos - 1)) if h.kind == 'mfma' else max(need, 5 - (self.pos - h.pos - 1))
        if need > 0: self.nop(need)
        self.hist = []

    def waitcnt(self, vm=None, lg=None):
        parts = []
        if vm is not None:
            vm = min(vm, 63)
            if vm < len(self.vm):
                self.vm = self.vm[len(self.vm)-vm:] if vm > 0 else []
                parts.append('vmcnt(%d)' % vm)
        if lg is not None:
            lg = min(lg, 15)
            if lg < len(self.lg) or self.smem:
                if self.smem:
                    lg = 0
                self.lg = self.lg[len(self.lg)-lg:] if lg > 0 else []
                self.smem = 0
                parts.append('lgkmcnt(%d)' % lg)
        if parts:
            self.lines.append('    s_waitcnt ' + ' '.join(parts))
            self.pos += 1
            self.ninstr += 1
    def wait_all(self):
        self.lines.append('    s_waitcnt vmcnt(0) lgkmcnt(0)')
        self.pos += 1
        self.vm = []; self.lg = []; self.smem = 0
    def barrier(self):
        self.I('s_barrier')

    def I(self, op, *ops, mods=''):
        ops = [str(o) for o in ops]
        ins = Ins(); ins.passes = 0; ins.srcc = set(); ins.dst_exact = None; ins.wide = False
        vw, vr, sw, sr = set(), set(), set(), set()
        def add(o, w):
            k, r = parse_regs(o)
            if k == 'v': (vw if w else vr).update(r)
            elif k == 's': (sw if w else sr).update(r)
        kind = None
        is_dpp = 'dpp' in op or 'row_' in mods
        lds_dma = op.startswith('buffer_load') and (' lds' in (' ' + mods))
        if op.startswith('v_mfma'):
            kind = 'mfma'
            add(ops[0], True); add(ops[1], False); add(ops[2], False); add(ops[3], False)
            ins.passes = 8 if '32x32' in op else 4
            ins.srcc = parse_regs(ops[3])[1]
            ins.dst_exact = ops[0]
            ab = parse_regs(ops[1])[1] | parse_regs(ops[2])[1]
        elif op.startswith('v_permlane'):
            kind = 'permlane'
            add(ops[0], True); add(ops[1], True); add(ops[0], False); add(ops[1], False)
        elif op.startswith('v_readfirstlane') or op.startswith('v_readlane'):
            kind = 'readlane'
            add(ops[0], True)
            for o in ops[1:]: add(o, False)
        elif op.startswith('v_'):
            kind = 'trans' if op.split('_e')[0] in TRANS else 'valu'
            add(ops[0], True)
            for o in ops[1:]: add(o, False)
            if op.startswith('v_fmac') or op.startswith('v_fmaak') and False: add(ops[0], False)
            if op.startswith('v_fmac'): add(ops[0], False)
        elif op.startswith('buffer_load'):
            kind = 'vmem'
            if lds_dma:
                for o in ops: add(o, False)
                sr.add(124)
            else:
                add(ops[0], True)
                if 'd16' in op: add(ops[0], False)
                for o in ops[1:]: add(o, False)
        elif op.startswith('buffer_store') or op.startswith('buffer_atomic'):
            kind = 'vmem'
            for o in ops: add(o, False)
            ins.wide = ('x4' in op or 'x3' in op)
        elif op.startswith('ds_read') or op.startswith('ds_bpermute') or op.startswith('ds_swizzle'):
            kind = 'ds'
            add(ops[0], True)
            for o in ops[1:]: add(o, False)
        elif op.startswith('ds_write'):
            kind = 'ds'
            for o in ops: add(o, False)
        elif op.startswith('s_load'):
            kind = 'smem'
            add(ops[0], True)
            for o in ops[1:]: add(o, False)
        elif op.startswith('s_'):
            kind = 'salu'
            if op in ('s_barrier', 's_endpgm', 's_setprio', 's_sleep') or op.startswith('s_cbranch') or op == 's_branch':
                pass
            elif op.startswith('s_cmp'):
                for o in ops: add(o, False)
            else:
                add(ops[0], True)
                for o in ops[1:]: add(o, False)
        else:
            raise ValueError(op)
        ins.kind = kind; ins.vw = vw; ins.vr = vr; ins.sw = sw; ins.sr = sr
        touched = vr | vw
        for i in range(len(self.vm)-1, -1, -1):
            if self.vm[i] & touched:
                self.waitcnt(vm=len(self.vm)-1-i)
                break
        for i in range(len(self.lg)-1, -1, -1):
            if self.lg[i] & touched:
                self.waitcnt(lg=len(self.lg)-1-i)
                break
        if self.smem and ((sr | sw) & self.smem_regs):
            self.waitcnt(lg=0)
        need = 0
        for h in self.hist:
            el = self.pos - h.pos - 1
            req = 0
            if h.kind in ('valu', 'trans', 'permlane'):
                if kind == 'mfma' and (h.vw & vr): req = max(req, 2)
                if is_dpp and (h.vw & vr): req = max(req, 2)
                if kind == 'permlane' and (h.vw & vr): req = max(req, 2)
                if kind == 'readlane' and (h.vw & vr): req = max(req, 1)
                if h.kind == 'trans' and kind in ('valu', 'permlane', 'mfma') and (h.vw & (vr | vw)): req = max(req, 1)
            if h.kind in ('valu', 'trans', 'readlane') and h.sw:
                if kind in ('valu', 'trans', 'mfma') and (h.sw & sr): req = max(req, 2)
                if kind == 'vmem' and (h.sw & sr): req = max(req, 5)
                if kind == 'readlane' and (h.sw & sr): req = max(req, 4)
                if kind in ('salu', 'smem') and (h.sw & sr): req = max(req, 4)
            if h.kind == 'salu' and (124 in h.sw) and lds_dma: req = max(req, 1)
            if h.kind == 'mfma':
                big = 12 if h.passes == 8 else 8
                if kind in ('valu', 'trans', 'permlane', 'readlane', 'vmem', 'ds') and (h.vw & (vr | vw)): req = max(req, big)
                if kind == 'mfma':
                    if h.vw & ab: req = max(req, big)
                    if h.vw & ins.srcc:
                        if ops[3] == h.dst_exact and ins.passes == h.passes: pass
                        else: req = max(req, big - 2)
                    elif h.vw & vw:
                        req = max(req, big - 2)
                if kind in ('valu', 'trans', 'permlane') and (h.srcc & vw): req = max(req, 7 if h.passes == 8 else 3)
            if h.kind == 'vmem' and h.wide and kind in ('valu', 'trans', 'permlane', 'mfma') and (h.vr & vw): req = max(req, 2)
            need = max(need, req - el)
        if need > 0: self.nop(need)
        text = '    ' + op
        if ops: text += ' ' + ', '.join(ops)
        if mods: text += ' ' + mods
        self.lines.append(text)
        ins.pos = self.pos
        self.pos += 1
        self.ninstr += 1
        self.hist.append(ins)
        self.hist = [h for h in self.hist if self.pos - h.pos < 24]
        if vw or vr: self.max_v = max(self.max_v, max(vw | vr))
        ss = {x for x in (sw | sr) if x < 104}
        if ss: self.max_s = max(self.max_s, max(ss))
        if kind == 'vmem':
            self.vm.append(set() if (lds_dma or not op.startswith('buffer_load')) else set(vw))
        elif kind == 'ds':
            self.lg.append(set(vw))
        elif kind == 'smem':
            if not self.smem: self.smem_regs = set()
            self.smem = 1
            self.smem_regs |= sw
        return ins

    def text(self):
        return '\n'.join(self.lines) + '\n'
```

```python
XF0    = 0x0000000
XF1    = 0x0200000
XF2    = 0x0400000
XF3    = 0x0600000
HF     = 0x0800000
PHIQ   = 0x1000000
KVACC  = 0x1400000
WQKV_P = 0x1500000
WPHI_P = 0x1700000
WO_P   = 0x1710000
W1_P   = 0x1800000
W2_P   = 0x1A00000
CSQKV  = 0x1C00000
CS1    = 0x1C02000
WS_BYTES = 0x10000000
S, D, H, DH, F = 2048, 448, 16, 28, 1792
def perm(g, j):
    return 4*g + j if j < 4 else 16 + 4*g + (j-4)
KVPART = 0x1D00000
KVF    = 0x1F00000
```

```python
import sys
from emit import Emitter
from layout import *

KNAME = 'interleave_layers__linear_kernel_hedgehog__dense_activation_gelu__prompt_kernel'
LOG2E = 0x3fb8aa3b
kernels = []

def V(i, n=1):
    return 'v%d' % i if n == 1 else 'v[%d:%d]' % (i, i+n-1)
def Sg(i, n=1):
    return 's%d' % i if n == 1 else 's[%d:%d]' % (i, i+n-1)

def prologue(e, nwg, ptrs):
    e.I('s_cmp_ge_u32', 's2', nwg)
    e.I('s_cbranch_scc1', 'L_end_%s' % e.name)
    e.I('s_load_dwordx2', 's[4:5]', 's[0:1]', 88)
    tmp = 28
    for (off, srd, nb) in ptrs:
        e.I('s_load_dwordx2', Sg(srd, 2), 's[0:1]', off)
    e.I('v_and_b32', 'v1', 63, 'v0')
    e.I('v_lshrrev_b32', 'v2', 6, 'v0')
    e.I('v_readfirstlane_b32', 's20', 'v2')
    e.I('v_and_b32', 'v3', 15, 'v1')
    e.I('v_lshrrev_b32', 'v4', 4, 'v1')
    e.I('v_lshlrev_b32', 'v5', 4, 'v1')
    e.waitcnt(lg=0)
    e.I('s_mov_b32', 's8', 's4')
    e.I('s_and_b32', 's9', 's5', 0xffff)
    e.I('s_mov_b32', 's10', WS_BYTES)
    e.I('s_mov_b32', 's11', 0x20000)
    for (off, srd, nb) in ptrs:
        e.I('s_and_b32', Sg(srd+1), Sg(srd+1), 0xffff)
        e.I('s_mov_b32', Sg(srd+2), nb)
        e.I('s_mov_b32', Sg(srd+3), 0x20000)

def finish(e, name, grid, block, lds):
    e.label('L_end_%s' % name)
    e.raw('    s_endpgm')
    kernels.append((name, grid, block, lds, e.text(), e.max_v, e.max_s, e.ninstr))

def xreduce(e, op, v, tmp):
    e.I('v_mov_b32', tmp, v); e.I('v_permlane16_swap_b32', v, tmp); e.I(op, v, v, tmp)
    e.I('v_mov_b32', tmp, v); e.I('v_permlane32_swap_b32', v, tmp); e.I(op, v, v, tmp)

def rowreduce(e, op, regs):
    for sh in (8, 4, 2, 1):
        for r in regs:
            e.I(op + '_dpp', r, r, r, mods='row_ror:%d row_mask:0xf bank_mask:0xf' % sh)

def bf16_roundtrip(e, regs, tmpbase):
    for i in range(0, len(regs), 2):
        t = V(tmpbase + i//2)
        e.I('v_cvt_pk_bf16_f32', t, regs[i], regs[i+1])
    for i in range(0, len(regs), 2):
        t = V(tmpbase + i//2)
        e.I('v_lshlrev_b32', regs[i], 16, t)
        e.I('v_and_b32', regs[i+1], 0xffff0000, t)

def ln_stats(e, aS1, aS2, vmean_n, vrstd, t0, t1, masks):
    sD1, sD2, sD3, sDg = masks
    e.I('v_cndmask_b32', t0, V(aS2), V(aS2+1), sD1)
    e.I('v_cndmask_b32', t0, t0, V(aS2+2), sD2)
    e.I('v_cndmask_b32', t0, t0, V(aS2+3), sD3)
    e.I('v_cndmask_b32', t0, 0, t0, sDg)
    xreduce(e, 'v_add_f32', t0, t1)
    inv = 0x3b124925
    e.I('v_mul_f32', t1, inv, V(aS1))
    e.I('v_mul_f32', t0, inv, t0)
    e.I('v_fma_f32', t0, '-' + t1, t1, t0)
    e.I('v_max_f32', t0, 0, t0)
    e.I('v_add_f32', t0, 0x3727c5ac, t0)
    e.I('v_rsq_f32', vrstd, t0)
    e.I('v_mul_f32', vmean_n, t1, vrstd)
    e.I('v_sub_f32', vmean_n, 0, vmean_n)

def diag_masks(e, base):
    e.I('v_and_b32', 'v6', 3, 'v3')
    e.I('v_lshrrev_b32', 'v7', 2, 'v3')
    e.I('v_cmp_eq_u32', Sg(base, 2), 1, 'v6')
    e.I('v_cmp_eq_u32', Sg(base+2, 2), 2, 'v6')
    e.I('v_cmp_eq_u32', Sg(base+4, 2), 3, 'v6')
    e.I('v_cmp_eq_u32', Sg(base+6, 2), 'v4', 'v7')
    return [Sg(base+2*i, 2) for i in range(4)]

def gen_k0():
    name = 'prep_kernel'
    e = Emitter(); e.name = name
    NJOB = 494
    NWG = (NJOB + 3)//4
    prologue(e, NWG, [(0, 12, S*D*2), (8, 16, D*3*D*2), (16, 24, H*DH*DH*2), (24, 28, D*D*2),
                      (40, 32, D*F*2), (56, 36, F*D*2)])
    e.I('s_lshl_b32', 's21', 's2', 2)
    e.I('s_add_u32', 's21', 's21', 's20')
    OOB = 0x40000000
    def pack(srd, stride, nks, ksrow, outbase, s_idx, colsum_base, gvalid_hi):
        R = 16; R2 = 96
        for ks in range(nks):
            for j in range(8):
                e.I('s_add_u32', 's23', 's22', (ksrow*ks + (j & 3))*stride)
                e.I('buffer_load_ushort', V(R2 + ks*8 + j), 'v8' if j < 4 else 'v9', Sg(srd, 4), 's23', mods='offen')
        for ks in range(nks):
            for q in range(4):
                e.I('v_lshl_or_b32', V(R + ks*4 + q), V(R2 + ks*8 + 2*q + 1), 16, V(R2 + ks*8 + 2*q))
        e.I('s_mul_i32', 's23', s_idx, nks*1024)
        e.I('s_add_u32', 's23', 's23', outbase)
        if colsum_base is not None:
            e.I('v_mov_b32', 'v10', 0)
        for ks in range(nks):
            if ks % 4 == 0 and ks: e.I('s_add_u32', 's23', 's23', 4096)
            e.I('buffer_store_dwordx4', V(R+ks*4, 4), 'v5', 's[8:11]', 's23', mods='offen offset:%d' % ((ks % 4)*1024))
            if colsum_base is not None:
                for q in range(4):
                    e.I('v_lshlrev_b32', 'v11', 16, V(R+ks*4+q))
                    e.I('v_and_b32', 'v12', 0xffff0000, V(R+ks*4+q))
                    e.I('v_add_f32', 'v10', 'v10', 'v11')
                    e.I('v_add_f32', 'v10', 'v10', 'v12')
        if colsum_base is not None:
            xreduce(e, 'v_add_f32', 'v10', 'v11')
            e.I('v_lshlrev_b32', 'v11', 2, 'v3')
            e.I('s_lshl_b32', 's23', s_idx, 6)
            e.I('s_add_u32', 's23', 's23', colsum_base)
            e.I('buffer_store_dword', 'v10', 'v11', 's[8:11]', 's23', mods='offen')
        e.I('s_branch', 'L_end_%s' % name)

    e.I('s_cmp_lt_u32', 's21', 96);  e.I('s_cbranch_scc1', 'L_p_wqkv')
    e.I('s_cmp_lt_u32', 's21', 208); e.I('s_cbranch_scc1', 'L_p_w1')
    e.I('s_cmp_lt_u32', 's21', 320); e.I('s_cbranch_scc1', 'L_p_w2')
    e.I('s_cmp_lt_u32', 's21', 348); e.I('s_cbranch_scc1', 'L_p_wo')
    e.I('s_cmp_lt_u32', 's21', 476); e.I('s_cbranch_scc1', 'L_p_x')
    e.I('s_cmp_lt_u32', 's21', 478); e.I('s_cbranch_scc1', 'L_p_wphi')
    e.I('s_cmp_lt_u32', 's21', 494); e.I('s_cbranch_scc1', 'L_p_zero')
    e.I('s_branch', 'L_end_%s' % name)

    e.label('L_p_wqkv')
    e.I('s_mul_i32', 's40', 's21', 43); e.I('s_lshr_b32', 's40', 's40', 8)
    e.I('s_mul_i32', 's41', 's40', 6); e.I('s_sub_u32', 's41', 's21', 's41')
    e.I('s_lshr_b32', 's42', 's41', 1)
    e.I('s_and_b32', 's43', 's41', 1)
    e.I('s_mul_i32', 's44', 's42', 448); e.I('s_mul_i32', 's45', 's40', 28)
    e.I('s_add_u32', 's44', 's44', 's45'); e.I('s_lshl_b32', 's45', 's43', 4)
    e.I('s_add_u32', 's44', 's44', 's45')
    e.I('s_lshl_b32', 's22', 's44', 1)
    e.I('v_add_u32', 'v6', 's45', 'v3')
    e.I('v_cmp_gt_u32', 'vcc', 28, 'v6')
    e.I('s_mov_b32', 's46', 4*2688)
    e.I('v_mul_lo_u32', 'v8', 's46', 'v4')
    e.I('v_lshl_add_u32', 'v8', 'v3', 1, 'v8')
    e.I('v_mov_b32', 'v7', OOB)
    e.I('v_cndmask_b32', 'v8', 'v7', 'v8', 'vcc')
    e.I('v_add_u32', 'v9', 16*2688, 'v8')
    pack(16, 2688, 14, 32, WQKV_P, 's21', CSQKV, None)

    e.label('L_p_w1')
    e.I('s_sub_u32', 's40', 's21', 96)
    e.I('s_lshl_b32', 's22', 's40', 5)
    e.I('s_mov_b32', 's46', 4*3584)
    e.I('v_mul_lo_u32', 'v8', 's46', 'v4')
    e.I('v_lshl_add_u32', 'v8', 'v3', 1, 'v8')
    e.I('v_add_u32', 'v9', 16*3584, 'v8')
    pack(32, 3584, 14, 32, W1_P, 's40', CS1, None)

    e.label('L_p_w2')
    e.I('s_sub_u32', 's40', 's21', 208)
    e.I('s_lshr_b32', 's41', 's40', 2)
    e.I('s_and_b32', 's42', 's40', 3)
    e.I('s_lshl_b32', 's22', 's41', 5)
    e.I('s_mul_i32', 's43', 's42', 448*896)
    e.I('s_add_u32', 's22', 's22', 's43')
    e.I('s_mov_b32', 's46', 4*896)
    e.I('v_mul_lo_u32', 'v8', 's46', 'v4')
    e.I('v_lshl_add_u32', 'v8', 'v3', 1, 'v8')
    e.I('v_add_u32', 'v9', 16*896, 'v8')
    pack(36, 896, 14, 32, W2_P, 's40', None, None)

    e.label('L_p_wo')
    e.I('s_sub_u32', 's40', 's21', 320)
    e.I('s_lshl_b32', 's22', 's40', 5)
    e.I('s_mov_b32', 's46', 4*896)
    e.I('v_mul_lo_u32', 'v8', 's46', 'v4')
    e.I('v_lshl_add_u32', 'v8', 'v3', 1, 'v8')
    e.I('v_add_u32', 'v9', 16*896, 'v8')
    e.I('v_cmp_gt_u32', 'vcc', 3, 'v4')
    e.I('v_mov_b32', 'v7', OOB)
    e.I('v_cndmask_b32', 'v9', 'v7', 'v9', 'vcc')
    pack(28, 896, 16, 28, WO_P, 's40', None, None)

    e.label('L_p_x')
    e.I('s_sub_u32', 's40', 's21', 348)
    e.I('s_mul_i32', 's22', 's40', 16*896)
    e.I('v_mul_u32_u24', 'v8', 896, 'v3')
    e.I('v_lshl_add_u32', 'v8', 'v4', 3, 'v8')
    for ks in range(14):
        e.I('buffer_load_dwordx2', V(16+ks*4, 2), 'v8', 's[12:15]', 's22', mods='offen offset:%d' % (ks*64))
        e.I('buffer_load_dwordx2', V(16+ks*4+2, 2), 'v8', 's[12:15]', 's22', mods='offen offset:%d' % (ks*64+32))
    e.I('s_mul_i32', 's23', 's40', 14336)
    e.I('s_add_u32', 's23', 's23', XF0)
    for ks in range(14):
        if ks % 4 == 0 and ks: e.I('s_add_u32', 's23', 's23', 4096)
        e.I('buffer_store_dwordx4', V(16+ks*4, 4), 'v5', 's[8:11]', 's23', mods='offen offset:%d' % ((ks % 4)*1024))
    e.I('s_branch', 'L_end_%s' % name)

    e.label('L_p_wphi')
    e.I('s_sub_u32', 's40', 's21', 476)
    e.I('s_mul_i32', 's22', 's40', 8*1568)
    e.I('v_mul_u32_u24', 'v8', 4*56, 'v4')
    e.I('v_lshl_add_u32', 'v8', 'v3', 1, 'v8')
    e.I('v_mov_b32', 'v7', OOB)
    e.I('v_add_u32', 'v9', 16*56, 'v8')
    e.I('v_cmp_gt_u32', 'vcc', 3, 'v4')
    e.I('v_cndmask_b32', 'v9', 'v7', 'v9', 'vcc')
    e.I('v_add_u32', 'v10', 32, 'v8')
    e.I('v_add_u32', 'v11', 32, 'v9')
    e.I('v_cmp_gt_u32', 'vcc', 12, 'v3')
    e.I('v_cndmask_b32', 'v10', 'v7', 'v10', 'vcc')
    e.I('v_cndmask_b32', 'v11', 'v7', 'v11', 'vcc')
    for hh in range(8):
        for ft in range(2):
            for j in range(8):
                e.I('s_add_u32', 's23', 's22', hh*1568 + (j & 3)*56)
                voff = ['v8', 'v9', 'v10', 'v11'][ft*2 + (j >> 2)]
                e.I('buffer_load_ushort', V(96 + (hh*2+ft)*8 + j), voff, 's[24:27]', 's23', mods='offen')
    for fr in range(16):
        for q in range(4):
            e.I('v_lshl_or_b32', V(16 + fr*4 + q), V(96 + fr*8 + 2*q + 1), 16, V(96 + fr*8 + 2*q))
    e.I('s_lshl_b32', 's23', 's40', 14)
    e.I('s_add_u32', 's23', 's23', WPHI_P)
    for fr in range(16):
        if fr % 4 == 0 and fr: e.I('s_add_u32', 's23', 's23', 4096)
        e.I('buffer_store_dwordx4', V(16+fr*4, 4), 'v5', 's[8:11]', 's23', mods='offen offset:%d' % ((fr % 4)*1024))
    e.I('s_branch', 'L_end_%s' % name)

    e.label('L_p_zero')
    e.I('s_sub_u32', 's40', 's21', 478)
    e.I('s_lshl_b32', 's23', 's40', 14)
    e.I('s_add_u32', 's23', 's23', KVACC)
    for i in range(4): e.I('v_mov_b32', V(16+i), 0)
    for fr in range(16):
        if fr % 4 == 0 and fr: e.I('s_add_u32', 's23', 's23', 4096)
        e.I('buffer_store_dwordx4', V(16, 4), 'v5', 's[8:11]', 's23', mods='offen offset:%d' % ((fr % 4)*1024))
    finish(e, name, NWG, 256, 0)

def gen_k1(name, XIN, KV):
    e = Emitter(); e.name = name
    prologue(e, 256, [])
    e.I('s_lshr_b32', 's21', 's2', 4)
    e.I('s_and_b32', 's22', 's2', 15)
    e.I('s_lshl_b32', 's23', 's21', 3)
    e.I('s_add_u32', 's23', 's23', 's20')
    e.I('s_mul_i32', 's24', 's22', 86016)
    e.I('s_lshl_b32', 's25', 's20', 10)
    e.I('s_add_u32', 's24', 's24', 's25')
    e.I('s_add_u32', 's24', 's24', WQKV_P)
    for i in range(11):
        if i == 10:
            e.I('s_cmp_ge_u32', 's20', 4); e.I('s_cbranch_scc1', 'L_skipdma_%s' % name)
        e.I('s_add_u32', 's26', 's25', i*8192)
        e.I('s_mov_b32', 'm0', 's26')
        e.I('s_add_u32', 's27', 's24', i*8192)
        e.I('buffer_load_dwordx4', 'v5', 's[8:11]', 's27', mods='offen lds')
    e.label('L_skipdma_%s' % name)
    e.vm = [set()]*11
    ndma = len(e.vm)
    XR = 16
    e.I('s_mul_i32', 's26', 's23', 14336)
    e.I('s_add_u32', 's26', 's26', XIN)
    for ks in range(14):
        if ks % 4 == 0 and ks: e.I('s_add_u32', 's26', 's26', 4096)
        e.I('buffer_load_dwordx4', V(XR+ks*4, 4), 'v5', 's[8:11]', 's26', mods='offen offset:%d' % ((ks % 4)*1024))
    CSR = 156; CSV = 172; WPH = 176
    e.I('s_mul_i32', 's26', 's22', 384)
    e.I('s_add_u32', 's26', 's26', CSQKV)
    e.I('v_lshlrev_b32', 'v6', 4, 'v4')
    e.I('v_lshlrev_b32', 'v7', 2, 'v3')
    for t in range(4):
        e.I('buffer_load_dwordx4', V(CSR+4*t, 4), 'v6', 's[8:11]', 's26', mods='offen offset:%d' % (t*64))
    for t in range(2):
        e.I('buffer_load_dword', V(CSV+t), 'v7', 's[8:11]', 's26', mods='offen offset:%d' % (256+t*64))
    e.I('s_lshl_b32', 's26', 's22', 11)
    e.I('s_add_u32', 's26', 's26', WPHI_P)
    for ft in range(2):
        e.I('buffer_load_dwordx4', V(WPH+4*ft, 4), 'v5', 's[8:11]', 's26', mods='offen offset:%d' % (ft*1024))
    ONES = 152
    for i in range(4): e.I('v_mov_b32', V(ONES+i), 0x3f803f80)
    masks = diag_masks(e, 40)
    e.I('v_cmp_eq_u32', 's[48:49]', 3, 'v4')
    e.I('v_cmp_eq_u32', 's[50:51]', 12, 'v3')
    e.I('v_cmp_le_u32', 's[52:53]', 12, 'v3')
    e.I('v_add_u32', 'v8', 0x10000, 'v5')
    e.waitcnt(vm=len(e.vm)-ndma)
    e.barrier()
    BR = 72; ACC = 120
    def bread(ks):
        buf = BR + (ks & 1)*24
        for t in range(6):
            off = (t*14+ks)*1024
            if off < 65536: e.I('ds_read_b128', V(buf+4*t, 4), 'v5', mods='offset:%d' % off)
            else: e.I('ds_read_b128', V(buf+4*t, 4), 'v8', mods='offset:%d' % (off-65536))
    bread(0)
    for ks in range(14):
        if ks+1 < 14: bread(ks+1)
        buf = BR + (ks & 1)*24
        x = V(XR+ks*4, 4)
        def C(i): return V(ACC+4*i, 4) if ks else '0'
        e.I('v_mfma_f32_16x16x32_bf16', V(ACC+24, 4), V(ONES, 4), x, C(6))
        e.I('v_mfma_f32_16x16x32_bf16', V(ACC+28, 4), x, x, C(7))
        for t in range(4):
            e.I('v_mfma_f32_16x16x32_bf16', V(ACC+4*t, 4), V(buf+4*t, 4), x, C(t))
        for t in range(4, 6):
            e.I('v_mfma_f32_16x16x32_bf16', V(ACC+4*t, 4), x, V(buf+4*t, 4), C(t))
    T = 184
    vNM, vRS = V(T), V(T+1)
    ln_stats(e, ACC+24, ACC+28, vNM, vRS, V(T+2), V(T+3), masks)
    STAT = 0x16000
    e.I('s_lshl_b32', 's26', 's20', 7)
    e.I('s_add_u32', 's26', 's26', STAT)
    e.I('v_lshl_add_u32', 'v9', 'v3', 3, 's26')
    e.I('v_lshl_add_u32', 'v10', 'v4', 5, 's26')
    e.I('ds_write_b64', 'v9', V(T, 2))
    e.waitcnt(lg=0)
    e.I('ds_read_b128', V(T+4, 4), 'v10')
    e.I('ds_read_b128', V(T+8, 4), 'v10', mods='offset:16')
    QF = T+12; KF = T+16; TT = T+20
    for (t0, FR) in ((0, QF), (2, KF)):
        for t in range(2):
            for r in range(4):
                e.I('v_mul_f32', V(TT+4*t+r), vNM, V(CSR+4*(t0+t)+r))
            for r in range(4):
                e.I('v_fmac_f32', V(TT+4*t+r), V(ACC+4*(t0+t)+r), vRS)
            e.I('v_cvt_pk_bf16_f32', V(FR+2*t), V(TT+4*t), V(TT+4*t+1))
            e.I('v_cvt_pk_bf16_f32', V(FR+2*t+1), V(TT+4*t+2), V(TT+4*t+3))
    PQ = ACC; PK = ACC+8
    e.I('v_mfma_f32_16x16x32_bf16', V(PQ, 4), V(WPH, 4), V(QF, 4), '0')
    e.I('v_mfma_f32_16x16x32_bf16', V(PQ+4, 4), V(WPH+4, 4), V(QF, 4), '0')
    e.I('v_mfma_f32_16x16x32_bf16', V(PK, 4), V(KF, 4), V(WPH, 4), '0')
    e.I('v_mfma_f32_16x16x32_bf16', V(PK+4, 4), V(KF, 4), V(WPH+4, 4), '0')
    VF = T+28
    for t in range(2):
        for r in range(4):
            nm = V(T+4+2*r); rs = V(T+5+2*r)
            e.I('v_mul_f32', V(TT+4*t+r), nm, V(CSV+t))
            e.I('v_fmac_f32', V(TT+4*t+r), V(ACC+16+4*t+r), rs)
            if t == 1:
                e.I('v_cndmask_b32', V(TT+4+r), V(TT+4+r), 1.0, 's[50:51]')
        e.I('v_cvt_pk_bf16_f32', V(VF+2*t), V(TT+4*t), V(TT+4*t+1))
        e.I('v_cvt_pk_bf16_f32', V(VF+2*t+1), V(TT+4*t+2), V(TT+4*t+3))
    P = [V(PQ+i) for i in range(8)]
    bf16_roundtrip(e, P, TT)
    A = T+32
    PM = [V(A+i) for i in range(4)]; PN = [V(A+4+i) for i in range(4)]
    e.I('v_mov_b32', V(A+8), 0xff7fffff); e.I('v_mov_b32', V(A+9), 0x7f7fffff)
    for r in range(4):
        e.I('v_cndmask_b32', PM[r], P[4+r], V(A+8), 's[48:49]')
        e.I('v_cndmask_b32', PN[r], P[4+r], V(A+9), 's[48:49]')
    mx, mn, tmp = V(A+10), V(A+11), V(A+12)
    e.I('v_max3_f32', mx, P[0], P[1], P[2]); e.I('v_min3_f32', mn, P[0], P[1], P[2])
    e.I('v_max3_f32', mx, mx, P[3], PM[0]); e.I('v_min3_f32', mn, mn, P[3], PN[0])
    e.I('v_max3_f32', mx, mx, PM[1], PM[2]); e.I('v_min3_f32', mn, mn, PN[1], PN[2])
    e.I('v_max_f32', mx, mx, PM[3]); e.I('v_min_f32', mn, mn, PN[3])
    xreduce(e, 'v_max_f32', mx, tmp); xreduce(e, 'v_min_f32', mn, tmp)
    e.I('v_mul_f32', mx, LOG2E, mx); e.I('v_mul_f32', mn, LOG2E, mn)
    e.I('s_mov_b32', 's26', LOG2E)
    EP = [V(A+16+i) for i in range(8)]; EN = [V(A+24+i) for i in range(8)]
    for i in range(8):
        sp = P[i] if i < 4 else PM[i-4]; sn = P[i] if i < 4 else PN[i-4]
        e.I('v_fma_f32', EP[i], sp, 's26', '-' + mx)
        e.I('v_fma_f32', EN[i], '-' + sn, 's26', mn)
    for i in range(8):
        e.I('v_exp_f32', EP[i], EP[i]); e.I('v_exp_f32', EN[i], EN[i])
    sp_, sn_ = V(A+13), V(A+14)
    e.I('v_add_f32', sp_, EP[0], EP[1]); e.I('v_add_f32', sn_, EN[0], EN[1])
    for i in range(2, 8):
        e.I('v_add_f32', sp_, sp_, EP[i]); e.I('v_add_f32', sn_, sn_, EN[i])
    xreduce(e, 'v_add_f32', sp_, tmp); xreduce(e, 'v_add_f32', sn_, tmp)
    e.I('v_rcp_f32', sp_, sp_); e.I('v_rcp_f32', sn_, sn_)
    for i in range(8):
        e.I('v_mul_f32', EP[i], EP[i], sp_); e.I('v_mul_f32', EN[i], EN[i], sn_)
    OQ = TT
    for i in range(4):
        e.I('v_cvt_pk_bf16_f32', V(OQ+i), EP[2*i], EP[2*i+1])
        e.I('v_cvt_pk_bf16_f32', V(OQ+4+i), EN[2*i], EN[2*i+1])
    e.I('s_lshl_b32', 's26', 's23', 4); e.I('s_add_u32', 's26', 's26', 's22')
    e.I('s_lshl_b32', 's26', 's26', 11); e.I('s_add_u32', 's26', 's26', PHIQ)
    e.I('buffer_store_dwordx4', V(OQ, 4), 'v5', 's[8:11]', 's26', mods='offen')
    e.I('buffer_store_dwordx4', V(OQ+4, 4), 'v5', 's[8:11]', 's26', mods='offen offset:1024')
    Kp = [V(PK+i) for i in range(8)]
    bf16_roundtrip(e, Kp, A+32)
    KM = [V(A+i) for i in range(4)]; KN = [V(A+4+i) for i in range(4)]
    MX = [V(A+32+i) for i in range(4)]; MN = [V(A+36+i) for i in range(4)]
    for r in range(4):
        e.I('v_cndmask_b32', KM[r], Kp[4+r], V(A+8), 's[52:53]')
        e.I('v_cndmask_b32', KN[r], Kp[4+r], V(A+9), 's[52:53]')
    for r in range(4):
        e.I('v_max_f32', MX[r], Kp[r], KM[r]); e.I('v_min_f32', MN[r], Kp[r], KN[r])
    rowreduce(e, 'v_max_f32', MX); rowreduce(e, 'v_min_f32', MN)
    for r in range(4):
        e.I('v_mul_f32', MX[r], LOG2E, MX[r]); e.I('v_mul_f32', MN[r], LOG2E, MN[r])
    e.I('s_mov_b32', 's26', LOG2E)
    for i in range(8):
        r = i & 3
        sp = Kp[i] if i < 4 else KM[r]; sn = Kp[i] if i < 4 else KN[r]
        e.I('v_fma_f32', EP[i], sp, 's26', '-' + MX[r])
        e.I('v_fma_f32', EN[i], '-' + sn, 's26', MN[r])
    for i in range(8):
        e.I('v_exp_f32', EP[i], EP[i]); e.I('v_exp_f32', EN[i], EN[i])
    for r in range(4):
        e.I('v_add_f32', MX[r], EP[r], EP[4+r]); e.I('v_add_f32', MN[r], EN[r], EN[4+r])
    rowreduce(e, 'v_add_f32', MX); rowreduce(e, 'v_add_f32', MN)
    for r in range(4):
        e.I('v_rcp_f32', MX[r], MX[r]); e.I('v_rcp_f32', MN[r], MN[r])
    for i in range(8):
        e.I('v_mul_f32', EP[i], EP[i], MX[i & 3]); e.I('v_mul_f32', EN[i], EN[i], MN[i & 3])
    PF = A
    for ft in range(2):
        e.I('v_cvt_pk_bf16_f32', V(PF+2*ft), EP[4*ft], EP[4*ft+1])
        e.I('v_cvt_pk_bf16_f32', V(PF+2*ft+1), EP[4*ft+2], EP[4*ft+3])
        e.I('v_cvt_pk_bf16_f32', V(PF+4+2*ft), EN[4*ft], EN[4*ft+1])
        e.I('v_cvt_pk_bf16_f32', V(PF+4+2*ft+1), EN[4*ft+2], EN[4*ft+3])
    KVR = BR
    for dt in range(2):
        for ft in range(4):
            e.I('v_mfma_f32_16x16x16_bf16', V(KVR+4*(dt*4+ft), 4), V(PF+2*ft, 2), V(VF+2*dt, 2), '0')
    e.waitcnt(lg=0)
    e.barrier()
    e.I('s_lshl_b32', 's26', 's20', 13)
    e.I('v_add_u32', 'v9', 's26', 'v5')
    for i in range(8):
        e.I('ds_write_b128', 'v9', V(KVR+4*i, 4), mods='offset:%d' % (i*1024))
    e.waitcnt(lg=0)
    e.barrier()
    e.I('s_lshl_b32', 's26', 's20', 10)
    e.I('v_add_u32', 'v9', 's26', 'v5')
    for w in range(8):
        e.I('ds_read_b128', V(KVR+4*w, 4), 'v9', mods='offset:%d' % (w*8192))
    for w in range(1, 8):
        for r in range(4):
            e.I('v_add_f32', V(KVR+r), V(KVR+r), V(KVR+4*w+r))
    e.I('s_lshl_b32', 's26', 's22', 13); e.I('s_lshl_b32', 's27', 's20', 10)
    e.I('s_add_u32', 's26', 's26', 's27'); e.I('s_add_u32', 's26', 's26', KV)
    e.I('v_lshlrev_b32', 'v9', 2, 'v1')
    for r in range(4):
        e.I('buffer_atomic_add_f32', V(KVR+r), 'v9', 's[8:11]', 's26', mods='offen offset:%d' % (r*256))
    finish(e, name, 256, 512, 0x16400)

def reduce_epilogue(e, ACC, XIN, XOUT, bias_srd, final_srd):
    RX = 200; RB = 204
    e.I('s_lshr_b32', 's26', 's20', 1)
    e.I('s_and_b32', 's27', 's20', 1)
    e.I('s_lshl_b32', 's28', 's21', 2); e.I('s_add_u32', 's28', 's28', 's26')
    e.I('s_lshl_b32', 's29', 's22', 1); e.I('s_add_u32', 's29', 's29', 's27')
    e.I('s_mul_i32', 's30', 's28', 14336); e.I('s_lshl_b32', 's31', 's29', 10)
    e.I('s_add_u32', 's30', 's30', 's31')
    e.I('s_add_u32', 's31', 's30', XIN)
    e.I('buffer_load_dwordx4', V(RX, 4), 'v5', 's[8:11]', 's31', mods='offen')
    if bias_srd is not None:
        e.I('v_lshlrev_b32', 'v6', 3, 'v4')
        e.I('s_lshl_b32', 's31', 's29', 6)
        e.I('buffer_load_dwordx2', V(RB, 2), 'v6', Sg(bias_srd, 4), 's31', mods='offen')
        e.I('buffer_load_dwordx2', V(RB+2, 2), 'v6', Sg(bias_srd, 4), 's31', mods='offen offset:32')
    e.I('s_lshl_b32', 's31', 's20', 14)
    e.I('v_add_u32', 'v9', 's31', 'v5')
    for i in range(16):
        e.I('ds_write_b128', 'v9', V(ACC+4*i, 4), mods='offset:%d' % (i*1024))
    e.waitcnt(lg=0)
    e.barrier()
    e.I('s_lshl_b32', 's31', 's26', 12); e.I('s_lshl_b32', 's26', 's27', 11); e.I('s_add_u32', 's31', 's31', 's26')
    e.I('v_add_u32', 'v9', 's31', 'v5')
    e.I('v_add_u32', 'v10', 0x10000, 'v9')
    R = 16
    for w in range(8):
        a, o = ('v9', w*16384) if w < 4 else ('v10', (w-4)*16384)
        e.I('ds_read_b128', V(R+8*w, 4), a, mods='offset:%d' % o)
        e.I('ds_read_b128', V(R+8*w+4, 4), a, mods='offset:%d' % (o+1024))
    for w in range(1, 8):
        for r in range(8):
            e.I('v_add_f32', V(R+r), V(R+r), V(R+8*w+r))
    Sm = [V(R+r) for r in range(8)]
    T = R+8
    bf16_roundtrip(e, Sm, T)
    if bias_srd is not None:
        for q in range(4):
            e.I('v_lshlrev_b32', V(T+2*q), 16, V(RB+q)); e.I('v_and_b32', V(T+2*q+1), 0xffff0000, V(RB+q))
        for r in range(8): e.I('v_add_f32', Sm[r], Sm[r], V(T+r))
        bf16_roundtrip(e, Sm, T)
    for q in range(4):
        e.I('v_lshlrev_b32', V(T+2*q), 16, V(RX+q)); e.I('v_and_b32', V(T+2*q+1), 0xffff0000, V(RX+q))
    for r in range(8): e.I('v_add_f32', Sm[r], Sm[r], V(T+r))
    for q in range(4):
        e.I('v_cvt_pk_bf16_f32', V(T+8+q), Sm[2*q], Sm[2*q+1])
    if final_srd is None:
        e.I('s_add_u32', 's31', 's30', XOUT)
        e.I('buffer_store_dwordx4', V(T+8, 4), 'v5', 's[8:11]', 's31', mods='offen')
    else:
        e.I('v_mul_u32_u24', 'v6', 896, 'v3')
        e.I('v_lshl_add_u32', 'v6', 'v4', 3, 'v6')
        e.I('s_mul_i32', 's31', 's28', 16*896); e.I('s_lshl_b32', 's26', 's29', 6); e.I('s_add_u32', 's31', 's31', 's26')
        e.I('buffer_store_dwordx2', V(T+8, 2), 'v6', Sg(final_srd, 4), 's31', mods='offen')
        e.I('buffer_store_dwordx2', V(T+10, 2), 'v6', Sg(final_srd, 4), 's31', mods='offen offset:32')

def split_wg_64(e):
    e.I('s_mul_i32', 's21', 's2', 9363); e.I('s_lshr_b32', 's21', 's21', 16)
    e.I('s_mul_i32', 's22', 's21', 7); e.I('s_sub_u32', 's22', 's2', 's22')

def gen_k2(name, XIN, XOUT, KV):
    e = Emitter(); e.name = name
    prologue(e, 224, [])
    split_wg_64(e)
    e.I('v_lshlrev_b32', 'v7', 2, 'v1')
    e.I('v_cmp_eq_u32', 's[48:49]', 3, 'v4')
    ACC = 64
    KVF = 128
    PQ = 192
    WOF = 16
    NUM = 48
    for hh in range(2):
        e.I('s_lshl_b32', 's26', 's20', 1); e.I('s_add_u32', 's26', 's26', hh)
        e.I('s_lshl_b32', 's27', 's26', 13); e.I('s_add_u32', 's27', 's27', KV)
        for i in range(32):
            if i == 16: e.I('s_add_u32', 's27', 's27', 4096)
            e.I('buffer_load_dword', V(KVF+32*hh+i), 'v7', 's[8:11]', 's27', mods='offen offset:%d' % ((i % 16)*256))
        e.I('s_lshl_b32', 's27', 's21', 2+4+11)
        e.I('s_lshl_b32', 's28', 's26', 11); e.I('s_add_u32', 's27', 's27', 's28'); e.I('s_add_u32', 's27', 's27', PHIQ)
        for tt in range(4):
            if tt: e.I('s_add_u32', 's27', 's27', 32768)
            for ks in range(2):
                e.I('buffer_load_dwordx4', V(PQ+32*hh+8*tt+4*ks, 4), 'v5', 's[8:11]', 's27', mods='offen offset:%d' % (ks*1024))
        e.I('s_lshl_b32', 's27', 's22', 2+14)
        e.I('s_lshl_b32', 's28', 's26', 10); e.I('s_add_u32', 's27', 's27', 's28'); e.I('s_add_u32', 's27', 's27', WO_P)
        for nt in range(4):
            if nt: e.I('s_add_u32', 's27', 's27', 16384)
            e.I('buffer_load_dwordx4', V(WOF+16*hh+4*nt, 4), 'v5', 's[8:11]', 's27', mods='offen')
    for hh in range(2):
        kb = KVF+32*hh
        for fr in range(4):
            for q in range(4):
                e.I('v_cvt_pk_bf16_f32', V(kb+4*fr+q), V(kb+8*fr+2*q), V(kb+8*fr+2*q+1))
        for half in range(2):
            for t2 in range(2):
                tt = 2*half+t2
                for dt in range(2):
                    for ks in range(2):
                        d = V(NUM+8*t2+4*dt, 4)
                        e.I('v_mfma_f32_16x16x32_bf16', d, V(kb+4*(dt*2+ks), 4), V(PQ+32*hh+8*tt+4*ks, 4), d if ks else '0')
            OF = kb+16
            TMP = kb+24
            for t2 in range(2):
                N = [V(NUM+8*t2+i) for i in range(8)]
                bf16_roundtrip(e, N, TMP)
                den = V(TMP+4); t1 = V(TMP+5)
                e.I('v_cndmask_b32', den, 0, N[4], 's[48:49]')
                xreduce(e, 'v_add_f32', den, t1)
                e.I('v_add_f32', den, 0x358637bd, den)
                e.I('v_cvt_pk_bf16_f32', den, den, den)
                e.I('v_lshlrev_b32', den, 16, den)
                e.I('v_rcp_f32', den, den)
                for i in range(8): e.I('v_mul_f32', N[i], N[i], den)
                for q in range(4):
                    e.I('v_cvt_pk_bf16_f32', V(OF+4*t2+q), N[2*q], N[2*q+1])
            for t2 in range(2):
                tt = 2*half+t2
                for nt in range(4):
                    d = V(ACC+4*(tt*4+nt), 4)
                    e.I('v_mfma_f32_16x16x32_bf16', d, V(WOF+16*hh+4*nt, 4), V(OF+4*t2, 4), d if hh else '0')
    reduce_epilogue(e, ACC, XIN, XOUT, None, None)
    finish(e, name, 224, 512, 0x20000)

def gen_k3(name, XIN):
    e = Emitter(); e.name = name
    prologue(e, 256, [(48, 12, F*2)])
    e.I('s_lshr_b32', 's21', 's2', 4)
    e.I('s_and_b32', 's22', 's2', 15)
    e.I('s_lshl_b32', 's23', 's21', 3)
    e.I('s_add_u32', 's23', 's23', 's20')
    e.I('s_mul_i32', 's24', 's22', 7*14336)
    e.I('s_lshl_b32', 's25', 's20', 10)
    e.I('s_add_u32', 's24', 's24', 's25')
    e.I('s_add_u32', 's24', 's24', W1_P)
    for i in range(13):
        if i == 12:
            e.I('s_cmp_ge_u32', 's20', 2); e.I('s_cbranch_scc1', 'L_skipdma_%s' % name)
        e.I('s_add_u32', 's26', 's25', i*8192)
        e.I('s_mov_b32', 'm0', 's26')
        e.I('s_add_u32', 's27', 's24', i*8192)
        e.I('buffer_load_dwordx4', 'v5', 's[8:11]', 's27', mods='offen lds')
    e.label('L_skipdma_%s' % name)
    e.vm = [set()]*13
    ndma = len(e.vm)
    XR = 16
    e.I('s_mul_i32', 's26', 's23', 14336)
    e.I('s_add_u32', 's26', 's26', XIN)
    for ks in range(14):
        if ks % 4 == 0 and ks: e.I('s_add_u32', 's26', 's26', 4096)
        e.I('buffer_load_dwordx4', V(XR+ks*4, 4), 'v5', 's[8:11]', 's26', mods='offen offset:%d' % ((ks % 4)*1024))
    CSR = 176; B1R = 204
    e.I('s_mul_i32', 's26', 's22', 448); e.I('s_add_u32', 's26', 's26', CS1)
    e.I('v_lshlrev_b32', 'v6', 4, 'v4')
    e.I('v_lshlrev_b32', 'v7', 3, 'v4')
    e.I('s_mul_i32', 's27', 's22', 224)
    for t in range(7):
        e.I('buffer_load_dwordx4', V(CSR+4*t, 4), 'v6', 's[8:11]', 's26', mods='offen offset:%d' % (t*64))
        e.I('buffer_load_dwordx2', V(B1R+2*t, 2), 'v7', 's[12:15]', 's27', mods='offen offset:%d' % (t*32))
    ONES = 172
    for i in range(4): e.I('v_mov_b32', V(ONES+i), 0x3f803f80)
    masks = diag_masks(e, 40)
    e.I('v_add_u32', 'v8', 0x10000, 'v5')
    e.waitcnt(vm=len(e.vm)-ndma)
    e.barrier()
    BR = 72; ACC = 128
    def bread(ks):
        buf = BR + (ks & 1)*28
        for t in range(7):
            off = (t*14+ks)*1024
            if off < 65536: e.I('ds_read_b128', V(buf+4*t, 4), 'v5', mods='offset:%d' % off)
            else: e.I('ds_read_b128', V(buf+4*t, 4), 'v8', mods='offset:%d' % (off-65536))
    bread(0)
    for ks in range(14):
        if ks+1 < 14: bread(ks+1)
        buf = BR + (ks & 1)*28
        x = V(XR+ks*4, 4)
        def C(i): return V(ACC+4*i, 4) if ks else '0'
        e.I('v_mfma_f32_16x16x32_bf16', V(ACC+28, 4), V(ONES, 4), x, C(7))
        e.I('v_mfma_f32_16x16x32_bf16', V(ACC+32, 4), x, x, C(8))
        for t in range(7):
            e.I('v_mfma_f32_16x16x32_bf16', V(ACC+4*t, 4), V(buf+4*t, 4), x, C(t))
    T = 220
    vNM, vRS = V(T), V(T+1)
    ln_stats(e, ACC+28, ACC+32, vNM, vRS, V(T+2), V(T+3), masks)
    e.I('s_mul_i32', 's26', 's23', 56*1024); e.I('s_add_u32', 's26', 's26', HF)
    e.I('s_mul_i32', 's27', 's22', 7)
    e.I('s_mov_b32', 's34', 0x3d372713)
    e.I('s_mov_b32', 's35', 0xc0135761)
    W = 16
    for t in range(7):
        Hh = [V(W+8*(t % 2)+r) for r in range(4)]
        U = [V(W+8*(t % 2)+4+r) for r in range(4)]
        for r in range(4): e.I('v_mul_f32', Hh[r], vNM, V(CSR+4*t+r))
        for r in range(4): e.I('v_fmac_f32', Hh[r], V(ACC+4*t+r), vRS)
        bf16_roundtrip(e, Hh, T+4)
        for q in range(2):
            e.I('v_lshlrev_b32', U[2*q], 16, V(B1R+2*t+q)); e.I('v_and_b32', U[2*q+1], 0xffff0000, V(B1R+2*t+q))
        for r in range(4): e.I('v_add_f32', Hh[r], Hh[r], U[r])
        bf16_roundtrip(e, Hh, T+4)
        for r in range(4): e.I('v_mul_f32', U[r], Hh[r], Hh[r])
        for r in range(4): e.I('v_fma_f32', U[r], U[r], 's34', 1.0)
        for r in range(4): e.I('v_mul_f32', U[r], U[r], Hh[r])
        for r in range(4): e.I('v_mul_f32', U[r], 's35', U[r])
        for r in range(4): e.I('v_exp_f32', U[r], U[r])
        for r in range(4): e.I('v_add_f32', U[r], 1.0, U[r])
        for r in range(4): e.I('v_rcp_f32', U[r], U[r])
        for r in range(4): e.I('v_mul_f32', Hh[r], Hh[r], U[r])
        O = V(T+8+2*(t % 2), 2)
        e.I('v_cvt_pk_bf16_f32', V(T+8+2*(t % 2)), Hh[0], Hh[1])
        e.I('v_cvt_pk_bf16_f32', V(T+9+2*(t % 2)), Hh[2], Hh[3])
        e.I('s_add_u32', 's28', 's27', t)
        e.I('s_lshr_b32', 's29', 's28', 1); e.I('s_lshl_b32', 's29', 's29', 10)
        e.I('s_and_b32', 's28', 's28', 1); e.I('s_lshl_b32', 's28', 's28', 3)
        e.I('s_add_u32', 's29', 's29', 's28'); e.I('s_add_u32', 's29', 's29', 's26')
        e.I('buffer_store_dwordx2', O, 'v5', 's[8:11]', 's29', mods='offen')
    finish(e, name, 256, 512, 13*8192)

def gen_k4(name, XIN, XOUT, final):
    e = Emitter(); e.name = name
    ptrs = [(64, 12, D*2)]
    if final: ptrs.append((72, 16, S*D*2))
    prologue(e, 224, ptrs)
    split_wg_64(e)
    ACC = 16
    AR = 80
    BRg = 144
    e.I('s_mul_i32', 's26', 's22', 4*56*1024); e.I('s_mul_i32', 's27', 's20', 7*1024)
    e.I('s_add_u32', 's26', 's26', 's27'); e.I('s_add_u32', 's26', 's26', W2_P)
    e.I('s_mul_i32', 's28', 's21', 4*56*1024); e.I('s_add_u32', 's28', 's28', 's27'); e.I('s_add_u32', 's28', 's28', HF)
    def loads(k):
        sl = k % 4
        for i in range(4):
            e.I('s_add_u32', 's29', 's28', i*56*1024 + k*1024)
            e.I('buffer_load_dwordx4', V(BRg+16*sl+4*i, 4), 'v5', 's[8:11]', 's29', mods='offen')
            e.I('s_add_u32', 's29', 's26', i*56*1024 + k*1024)
            e.I('buffer_load_dwordx4', V(AR+16*sl+4*i, 4), 'v5', 's[8:11]', 's29', mods='offen')
    for k in range(4): loads(k)
    for k in range(7):
        sl = k % 4
        for tt in range(4):
            for nt in range(4):
                d = V(ACC+4*(tt*4+nt), 4)
                e.I('v_mfma_f32_16x16x32_bf16', d, V(AR+16*sl+4*nt, 4), V(BRg+16*sl+4*tt, 4), d if k else '0')
        if k+4 < 7: loads(k+4)
    reduce_epilogue(e, ACC, XIN, XOUT, 12, 16 if final else None)
    finish(e, name, 224, 512, 0x20000)

def build():
    gen_k0()
    gen_k1('k1a_kernel', XF0, KVACC)
    gen_k2('k2a_kernel', XF0, XF1, KVACC)
    gen_k3('k3a_kernel', XF1)
    gen_k4('k4a_kernel', XF1, XF2, False)
    gen_k1('k1b_kernel', XF2, KVACC+0x20000)
    gen_k2('k2b_kernel', XF2, XF3, KVACC+0x20000)
    gen_k3('k3b_kernel', XF3)
    gen_k4('k4b_kernel', XF3, None, True)
    out = []
    hdr = open('cdna_kernels/%s.s.ref' % KNAME[:-7]).read().split('\n')
    for l in hdr:
        if l.startswith('; Override') : break
        out.append(l)
    for (name, grid, block, lds, text, mv, ms, ni) in kernels:
        out.append('; @launch kernel=%s grid=(%d,1,1) block=(%d,1,1) lds=%d' % (name, grid, block, lds))
    out.append('.amdgcn_target "amdgcn-amd-amdhsa--gfx950"')
    out.append('.text')
    for (name, grid, block, lds, text, mv, ms, ni) in kernels:
        out.append('.globl %s' % name)
        out.append('.p2align 8')
        out.append('.type %s,@function' % name)
        out.append('%s:' % name)
        out.append(text)
    out.append('.section .rodata,"a"')
    for (name, grid, block, lds, text, mv, ms, ni) in kernels:
        nv = ((mv + 1 + 7)//8)*8
        out.append('.p2align 6')
        out.append('.amdhsa_kernel %s' % name)
        out.append('  .amdhsa_next_free_vgpr %d' % nv)
        out.append('  .amdhsa_next_free_sgpr %d' % max(ms+1, 16))
        out.append('  .amdhsa_accum_offset %d' % nv)
        out.append('  .amdhsa_group_segment_fixed_size 0')
        out.append('  .amdhsa_kernarg_size 96')
        out.append('  .amdhsa_user_sgpr_count 2')
        out.append('  .amdhsa_user_sgpr_kernarg_segment_ptr 1')
        out.append('  .amdhsa_system_sgpr_workgroup_id_x 1')
        out.append('.end_amdhsa_kernel')
        sys.stderr.write('%s: %d instr, vgpr %d sgpr %d\n' % (name, ni, mv+1, ms+1))
    return '\n'.join(out) + '\n'

if __name__ == '__main__':
    txt = build()
    open(sys.argv[1], 'w').write(txt)
```

```python
import re

def parse_regs(op):
    op = op.strip()
    neg = op.startswith('-')
    if neg: op = op[1:]
    if op.startswith('abs(') and op.endswith(')'): op = op[4:-1]
    if op.startswith('|') and op.endswith('|'): op = op[1:-1]
    m = re.fullmatch(r'v(\d+)', op)
    if m: return ('v', {int(m.group(1))})
    m = re.fullmatch(r'v\[(\d+):(\d+)\]', op)
    if m: return ('v', set(range(int(m.group(1)), int(m.group(2))+1)))
    m = re.fullmatch(r's(\d+)', op)
    if m: return ('s', {int(m.group(1))})
    m = re.fullmatch(r's\[(\d+):(\d+)\]', op)
    if m: return ('s', set(range(int(m.group(1)), int(m.group(2))+1)))
    if op == 'vcc': return ('s', {106, 107})
    if op == 'exec': return ('s', {126, 127})
    if op == 'm0': return ('s', {124})
    return (None, set())

TRANS = ('v_exp_f32', 'v_log_f32', 'v_rcp_f32', 'v_rsq_f32', 'v_sqrt_f32', 'v_sin_f32', 'v_cos_f32')

class Ins:
    __slots__ = ('kind', 'vw', 'vr', 'sw', 'sr', 'pos', 'passes', 'srcc', 'dst_exact', 'wide')

class Emitter:
    def __init__(self):
        self.lines = []
        self.pos = 0
        self.hist = []
        self.vm = []
        self.lg = []
        self.smem = 0
        self.max_v = -1
        self.max_s = -1
        self.ninstr = 0
        self.vmc = 0

    def raw(self, text):
        self.lines.append(text)
    def comment(self, t):
        self.lines.append('    ; ' + t)
    def label(self, name):
        self.fence()
        self.lines.append(name + ':')
    def nop(self, n):
        while n > 0:
            k = min(n, 16)
            self.lines.append('    s_nop %d' % (k-1))
            self.pos += k
            n -= k
    def fence(self):
        need = 0
        for h in self.hist:
            need = max(need, 20 - (self.pos - h.pos - 1)) if h.kind == 'mfma' else max(need, 5 - (self.pos - h.pos - 1))
        if need > 0: self.nop(need)
        self.hist = []

    def waitcnt(self, vm=None, lg=None):
        parts = []
        if vm is not None:
            vm = min(vm, 63)
            if vm < len(self.vm):
                self.vm = self.vm[len(self.vm)-vm:] if vm > 0 else []
                parts.append('vmcnt(%d)' % vm)
        if lg is not None:
            lg = min(lg, 15)
            if lg < len(self.lg) or self.smem:
                if self.smem:
                    lg = 0
                self.lg = self.lg[len(self.lg)-lg:] if lg > 0 else []
                self.smem = 0
                parts.append('lgkmcnt(%d)' % lg)
        if parts:
            self.lines.append('    s_waitcnt ' + ' '.join(parts))
            self.pos += 1
            self.ninstr += 1
    def wait_mark(self, mark):
        self.waitcnt(vm=self.vmc - mark)
    def wait_all(self):
        self.lines.append('    s_waitcnt vmcnt(0) lgkmcnt(0)')
        self.pos += 1
        self.vm = []; self.lg = []; self.smem = 0
    def barrier(self):
        self.I('s_barrier')

    def I(self, op, *ops, mods=''):
        ops = [str(o) for o in ops]
        ins = Ins(); ins.passes = 0; ins.srcc = set(); ins.dst_exact = None; ins.wide = False
        vw, vr, sw, sr = set(), set(), set(), set()
        def add(o, w):
            k, r = parse_regs(o)
            if k == 'v': (vw if w else vr).update(r)
            elif k == 's': (sw if w else sr).update(r)
        kind = None
        is_dpp = 'dpp' in op or 'row_' in mods
        lds_dma = op.startswith('buffer_load') and (' lds' in (' ' + mods))
        if op.startswith('v_mfma'):
            kind = 'mfma'
            add(ops[0], True); add(ops[1], False); add(ops[2], False); add(ops[3], False)
            ins.passes = 8 if '32x32' in op else 4
            ins.srcc = parse_regs(ops[3])[1]
            ins.dst_exact = ops[0]
            ab = parse_regs(ops[1])[1] | parse_regs(ops[2])[1]
        elif op.startswith('v_permlane'):
            kind = 'permlane'
            add(ops[0], True); add(ops[1], True); add(ops[0], False); add(ops[1], False)
        elif op.startswith('v_readfirstlane') or op.startswith('v_readlane'):
            kind = 'readlane'
            add(ops[0], True)
            for o in ops[1:]: add(o, False)
        elif op.startswith('v_'):
            kind = 'trans' if op.split('_e')[0] in TRANS else 'valu'
            add(ops[0], True)
            for o in ops[1:]: add(o, False)
            if op.startswith('v_fmac') or op.startswith('v_fmaak') and False: add(ops[0], False)
            if op.startswith('v_fmac'): add(ops[0], False)
        elif op.startswith('buffer_load'):
            kind = 'vmem'
            if lds_dma:
                for o in ops: add(o, False)
                sr.add(124)
            else:
                add(ops[0], True)
                if 'd16' in op: add(ops[0], False)
                for o in ops[1:]: add(o, False)
        elif op.startswith('buffer_store') or op.startswith('buffer_atomic'):
            kind = 'vmem'
            for o in ops: add(o, False)
            ins.wide = ('x4' in op or 'x3' in op)
        elif op.startswith('ds_read') or op.startswith('ds_bpermute') or op.startswith('ds_swizzle'):
            kind = 'ds'
            add(ops[0], True)
            for o in ops[1:]: add(o, False)
        elif op.startswith('ds_write'):
            kind = 'ds'
            for o in ops: add(o, False)
        elif op.startswith('s_load') or op.startswith('s_mem'):
            kind = 'smem'
            add(ops[0], True)
            for o in ops[1:]: add(o, False)
        elif op.startswith('s_'):
            kind = 'salu'
            if op in ('s_barrier', 's_endpgm', 's_setprio', 's_sleep') or op.startswith('s_cbranch') or op == 's_branch':
                pass
            elif op.startswith('s_cmp'):
                for o in ops: add(o, False)
            else:
                add(ops[0], True)
                for o in ops[1:]: add(o, False)
        else:
            raise ValueError(op)
        ins.kind = kind; ins.vw = vw; ins.vr = vr; ins.sw = sw; ins.sr = sr
        touched = vr | vw
        for i in range(len(self.vm)-1, -1, -1):
            if self.vm[i] & touched:
                self.waitcnt(vm=len(self.vm)-1-i)
                break
        for i in range(len(self.lg)-1, -1, -1):
            if self.lg[i] & touched:
                self.waitcnt(lg=len(self.lg)-1-i)
                break
        if self.smem and ((sr | sw) & self.smem_regs):
            self.waitcnt(lg=0)
        need = 0
        for h in self.hist:
            el = self.pos - h.pos - 1
            req = 0
            if h.kind in ('valu', 'trans', 'permlane'):
                if kind == 'mfma' and (h.vw & vr): req = max(req, 2)
                if is_dpp and (h.vw & vr): req = max(req, 2)
                if kind == 'permlane' and (h.vw & vr): req = max(req, 2)
                if kind == 'readlane' and (h.vw & vr): req = max(req, 1)
                if h.kind == 'trans' and kind in ('valu', 'permlane', 'mfma') and (h.vw & (vr | vw)): req = max(req, 1)
            if h.kind in ('valu', 'trans', 'readlane') and h.sw:
                if kind in ('valu', 'trans', 'mfma') and (h.sw & sr): req = max(req, 2)
                if kind == 'vmem' and (h.sw & sr): req = max(req, 5)
                if kind == 'readlane' and (h.sw & sr): req = max(req, 4)
                if kind in ('salu', 'smem') and (h.sw & sr): req = max(req, 4)
            if h.kind == 'salu' and (124 in h.sw) and lds_dma: req = max(req, 1)
            if h.kind == 'mfma':
                big = 12 if h.passes == 8 else 8
                if kind in ('valu', 'trans', 'permlane', 'readlane', 'vmem', 'ds') and (h.vw & (vr | vw)): req = max(req, big)
                if kind == 'mfma':
                    if h.vw & ab: req = max(req, big)
                    if h.vw & ins.srcc:
                        if ops[3] == h.dst_exact and ins.passes == h.passes: pass
                        else: req = max(req, big - 2)
                    elif h.vw & vw:
                        req = max(req, big - 2)
                if kind in ('valu', 'trans', 'permlane') and (h.srcc & vw): req = max(req, 7 if h.passes == 8 else 3)
            if h.kind == 'vmem' and h.wide and kind in ('valu', 'trans', 'permlane', 'mfma') and (h.vr & vw): req = max(req, 2)
            need = max(need, req - el)
        if need > 0: self.nop(need)
        text = '    ' + op
        if ops: text += ' ' + ', '.join(ops)
        if mods: text += ' ' + mods
        self.lines.append(text)
        ins.pos = self.pos
        self.pos += 1
        self.ninstr += 1
        self.hist.append(ins)
        self.hist = [h for h in self.hist if self.pos - h.pos < 24]
        if vw or vr: self.max_v = max(self.max_v, max(vw | vr))
        ss = {x for x in (sw | sr) if x < 104}
        if ss: self.max_s = max(self.max_s, max(ss))
        if kind == 'vmem':
            self.vmc += 1
            self.vm.append(set() if (lds_dma or not op.startswith('buffer_load')) else set(vw))
        elif kind == 'ds':
            self.lg.append(set(vw))
        elif kind == 'smem':
            if not self.smem: self.smem_regs = set()
            self.smem = 1
            self.smem_regs |= sw
        return ins

    def text(self):
        return '\n'.join(self.lines) + '\n'
```

```python
import sys
from emit import Emitter
from layout import *

KNAME = 'interleave_layers__linear_kernel_hedgehog__dense_activation_gelu__prompt_kernel'
LOG2E = 0x3fb8aa3b
kernels = []

def V(i, n=1):
    return 'v%d' % i if n == 1 else 'v[%d:%d]' % (i, i+n-1)
def Sg(i, n=1):
    return 's%d' % i if n == 1 else 's[%d:%d]' % (i, i+n-1)

def prologue(e, nwg, ptrs):
    e.I('s_cmp_ge_u32', 's2', nwg)
    e.I('s_cbranch_scc1', 'L_end_%s' % e.name)
    if STAMPS: e.I('s_memrealtime', 's[90:91]')
    e.I('s_load_dwordx2', 's[4:5]', 's[0:1]', 88)
    tmp = 28
    for (off, srd, nb) in ptrs:
        e.I('s_load_dwordx2', Sg(srd, 2), 's[0:1]', off)
    e.I('v_and_b32', 'v1', 63, 'v0')
    e.I('v_lshrrev_b32', 'v2', 6, 'v0')
    e.I('v_readfirstlane_b32', 's20', 'v2')
    e.I('v_and_b32', 'v3', 15, 'v1')
    e.I('v_lshrrev_b32', 'v4', 4, 'v1')
    e.I('v_lshlrev_b32', 'v5', 4, 'v1')
    e.waitcnt(lg=0)
    e.I('s_mov_b32', 's8', 's4')
    e.I('s_and_b32', 's9', 's5', 0xffff)
    e.I('s_mov_b32', 's10', WS_BYTES)
    e.I('s_mov_b32', 's11', 0x20000)
    for (off, srd, nb) in ptrs:
        e.I('s_and_b32', Sg(srd+1), Sg(srd+1), 0xffff)
        e.I('s_mov_b32', Sg(srd+2), nb)
        e.I('s_mov_b32', Sg(srd+3), 0x20000)

STAMPS = False
STMOD = ' sc1'
def stamp(e, idx):
    if not STAMPS: return
    e.I('s_memtime', Sg(60+2*idx, 2))
    e.waitcnt(lg=0)
def dump_stamps(e, n):
    if not STAMPS: return
    e.I('s_cmp_lg_u32', 's20', 0); e.I('s_cbranch_scc1', 'L_end_%s' % e.name)
    e.I('s_lshl_b32', 's26', 's2', 6); e.I('s_add_u32', 's26', 's26', e.stampbase)
    e.I('v_mov_b32', 'v6', 0)
    for i in range(n):
        e.I('v_mov_b32', 'v7', Sg(60+2*i))
        e.I('buffer_store_dword', 'v7', 'v6', 's[8:11]', 's26', mods='offen offset:%d' % (4*i))
    e.I('s_memrealtime', 's[92:93]')
    e.I('v_mov_b32', 'v7', 's90'); e.I('buffer_store_dword', 'v7', 'v6', 's[8:11]', 's26', mods='offen offset:56')
    e.I('v_mov_b32', 'v7', 's92'); e.I('buffer_store_dword', 'v7', 'v6', 's[8:11]', 's26', mods='offen offset:60')

def finish(e, name, grid, block, lds):
    e.label('L_end_%s' % name)
    e.raw('    s_endpgm')
    kernels.append((name, grid, block, lds, e.text(), e.max_v, e.max_s, e.ninstr))

def xreduce(e, op, v, tmp):
    e.I('v_mov_b32', tmp, v); e.I('v_permlane16_swap_b32', v, tmp); e.I(op, v, v, tmp)
    e.I('v_mov_b32', tmp, v); e.I('v_permlane32_swap_b32', v, tmp); e.I(op, v, v, tmp)

def rowreduce(e, op, regs):
    for sh in (8, 4, 2, 1):
        for r in regs:
            e.I(op + '_dpp', r, r, r, mods='row_ror:%d row_mask:0xf bank_mask:0xf' % sh)

def bf16_roundtrip(e, regs, tmpbase):
    for i in range(0, len(regs), 2):
        t = V(tmpbase + i//2)
        e.I('v_cvt_pk_bf16_f32', t, regs[i], regs[i+1])
    for i in range(0, len(regs), 2):
        t = V(tmpbase + i//2)
        e.I('v_lshlrev_b32', regs[i], 16, t)
        e.I('v_and_b32', regs[i+1], 0xffff0000, t)

def ln_stats(e, aS1, aS2, vmean_n, vrstd, t0, t1, masks):
    sD1, sD2, sD3, sDg = masks
    e.I('v_cndmask_b32', t0, V(aS2), V(aS2+1), sD1)
    e.I('v_cndmask_b32', t0, t0, V(aS2+2), sD2)
    e.I('v_cndmask_b32', t0, t0, V(aS2+3), sD3)
    e.I('v_cndmask_b32', t0, 0, t0, sDg)
    xreduce(e, 'v_add_f32', t0, t1)
    inv = 0x3b124925
    e.I('v_mul_f32', t1, inv, V(aS1))
    e.I('v_mul_f32', t0, inv, t0)
    e.I('v_fma_f32', t0, '-' + t1, t1, t0)
    e.I('v_max_f32', t0, 0, t0)
    e.I('v_add_f32', t0, 0x3727c5ac, t0)
    e.I('v_rsq_f32', vrstd, t0)
    e.I('v_mul_f32', vmean_n, t1, vrstd)
    e.I('v_sub_f32', vmean_n, 0, vmean_n)

def diag_masks(e, base):
    e.I('v_and_b32', 'v12', 3, 'v3')
    e.I('v_lshrrev_b32', 'v13', 2, 'v3')
    e.I('v_cmp_eq_u32', Sg(base, 2), 1, 'v12')
    e.I('v_cmp_eq_u32', Sg(base+2, 2), 2, 'v12')
    e.I('v_cmp_eq_u32', Sg(base+4, 2), 3, 'v12')
    e.I('v_cmp_eq_u32', Sg(base+6, 2), 'v4', 'v13')
    return [Sg(base+2*i, 2) for i in range(4)]

def gen_k0():
    name = 'prep_kernel'
    e = Emitter(); e.name = name
    NJOB = 494
    NWG = (NJOB + 3)//4
    prologue(e, NWG, [(0, 12, S*D*2), (8, 16, D*3*D*2), (16, 24, H*DH*DH*2), (24, 28, D*D*2),
                      (40, 32, D*F*2), (56, 36, F*D*2)])
    e.stampbase = 0x1E80000; stamp(e, 0)
    e.I('s_lshl_b32', 's21', 's2', 2)
    e.I('s_add_u32', 's21', 's21', 's20')
    OOB = 0x40000000
    def pack(srd, stride, nks, ksrow, outbase, s_idx, colsum_base, gvalid_hi, s_out=None, ksmul=1024):
        R = 16; R2 = 96
        for ks in range(nks):
            for j in range(8):
                e.I('s_add_u32', 's23', 's22', (ksrow*ks + (j & 3))*stride)
                e.I('buffer_load_ushort', V(R2 + ks*8 + j), 'v8' if j < 4 else 'v9', Sg(srd, 4), 's23', mods='offen')
        for ks in range(nks):
            for q in range(4):
                e.I('v_lshl_or_b32', V(R + ks*4 + q), V(R2 + ks*8 + 2*q + 1), 16, V(R2 + ks*8 + 2*q))
        if s_out is None:
            e.I('s_mul_i32', 's23', s_idx, nks*1024)
            e.I('s_add_u32', 's23', 's23', outbase)
        else:
            e.I('s_add_u32', 's23', s_out, outbase)
        if colsum_base is not None:
            e.I('v_mov_b32', 'v10', 0)
        for ks in range(nks):
            if ks: e.I('s_add_u32', 's23', 's23', ksmul)
            e.I('buffer_store_dwordx4', V(R+ks*4, 4), 'v5', 's[8:11]', 's23', mods='offen' + STMOD)
            if colsum_base is not None:
                for q in range(4):
                    e.I('v_lshlrev_b32', 'v11', 16, V(R+ks*4+q))
                    e.I('v_and_b32', 'v12', 0xffff0000, V(R+ks*4+q))
                    e.I('v_add_f32', 'v10', 'v10', 'v11')
                    e.I('v_add_f32', 'v10', 'v10', 'v12')
        if colsum_base is not None:
            xreduce(e, 'v_add_f32', 'v10', 'v11')
            e.I('v_lshlrev_b32', 'v11', 2, 'v3')
            e.I('s_lshl_b32', 's23', s_idx, 6)
            e.I('s_add_u32', 's23', 's23', colsum_base)
            e.I('buffer_store_dword', 'v10', 'v11', 's[8:11]', 's23', mods='offen')
        e.I('s_branch', 'L_k0_stamp')

    e.I('s_cmp_lt_u32', 's21', 96);  e.I('s_cbranch_scc1', 'L_p_wqkv')
    e.I('s_cmp_lt_u32', 's21', 208); e.I('s_cbranch_scc1', 'L_p_w1')
    e.I('s_cmp_lt_u32', 's21', 320); e.I('s_cbranch_scc1', 'L_p_w2')
    e.I('s_cmp_lt_u32', 's21', 348); e.I('s_cbranch_scc1', 'L_p_wo')
    e.I('s_cmp_lt_u32', 's21', 476); e.I('s_cbranch_scc1', 'L_p_x')
    e.I('s_cmp_lt_u32', 's21', 478); e.I('s_cbranch_scc1', 'L_p_wphi')
    e.I('s_cmp_lt_u32', 's21', 494); e.I('s_cbranch_scc1', 'L_p_zero')
    e.I('s_branch', 'L_end_%s' % name)

    e.label('L_p_wqkv')
    e.I('s_mul_i32', 's40', 's21', 43); e.I('s_lshr_b32', 's40', 's40', 8)
    e.I('s_mul_i32', 's41', 's40', 6); e.I('s_sub_u32', 's41', 's21', 's41')
    e.I('s_lshr_b32', 's42', 's41', 1)
    e.I('s_and_b32', 's43', 's41', 1)
    e.I('s_mul_i32', 's44', 's42', 448); e.I('s_mul_i32', 's45', 's40', 28)
    e.I('s_add_u32', 's44', 's44', 's45'); e.I('s_lshl_b32', 's45', 's43', 4)
    e.I('s_add_u32', 's44', 's44', 's45')
    e.I('s_lshl_b32', 's22', 's44', 1)
    e.I('v_add_u32', 'v6', 's45', 'v3')
    e.I('v_cmp_gt_u32', 'vcc', 28, 'v6')
    e.I('s_mov_b32', 's46', 4*2688)
    e.I('v_mul_lo_u32', 'v8', 's46', 'v4')
    e.I('v_lshl_add_u32', 'v8', 'v3', 1, 'v8')
    e.I('v_mov_b32', 'v7', OOB)
    e.I('v_cndmask_b32', 'v8', 'v7', 'v8', 'vcc')
    e.I('v_add_u32', 'v9', 16*2688, 'v8')
    e.I('s_mul_i32', 's47', 's40', 86016); e.I('s_lshl_b32', 's46', 's41', 10); e.I('s_add_u32', 's47', 's47', 's46')
    pack(16, 2688, 14, 32, WQKV_P, 's21', CSQKV, None, 's47', 6144)

    e.label('L_p_w1')
    e.I('s_sub_u32', 's40', 's21', 96)
    e.I('s_lshl_b32', 's22', 's40', 5)
    e.I('s_mov_b32', 's46', 4*3584)
    e.I('v_mul_lo_u32', 'v8', 's46', 'v4')
    e.I('v_lshl_add_u32', 'v8', 'v3', 1, 'v8')
    e.I('v_add_u32', 'v9', 16*3584, 'v8')
    e.I('s_lshr_b32', 's47', 's40', 3); e.I('s_mul_i32', 's47', 's47', 14*8192)
    e.I('s_and_b32', 's46', 's40', 7); e.I('s_lshl_b32', 's46', 's46', 10); e.I('s_add_u32', 's47', 's47', 's46')
    pack(32, 3584, 14, 32, W1_P, 's40', CS1, None, 's47', 8192)

    e.label('L_p_w2')
    e.I('s_sub_u32', 's40', 's21', 208)
    e.I('s_lshr_b32', 's41', 's40', 2)
    e.I('s_and_b32', 's42', 's40', 3)
    e.I('s_lshl_b32', 's22', 's41', 5)
    e.I('s_mul_i32', 's43', 's42', 448*896)
    e.I('s_add_u32', 's22', 's22', 's43')
    e.I('s_mov_b32', 's46', 4*896)
    e.I('v_mul_lo_u32', 'v8', 's46', 'v4')
    e.I('v_lshl_add_u32', 'v8', 'v3', 1, 'v8')
    e.I('v_add_u32', 'v9', 16*896, 'v8')
    pack(36, 896, 14, 32, W2_P, 's40', None, None)

    e.label('L_p_wo')
    e.I('s_sub_u32', 's40', 's21', 320)
    e.I('s_lshl_b32', 's22', 's40', 5)
    e.I('s_mov_b32', 's46', 4*896)
    e.I('v_mul_lo_u32', 'v8', 's46', 'v4')
    e.I('v_lshl_add_u32', 'v8', 'v3', 1, 'v8')
    e.I('v_add_u32', 'v9', 16*896, 'v8')
    e.I('v_cmp_gt_u32', 'vcc', 3, 'v4')
    e.I('v_mov_b32', 'v7', OOB)
    e.I('v_cndmask_b32', 'v9', 'v7', 'v9', 'vcc')
    pack(28, 896, 16, 28, WO_P, 's40', None, None)

    e.label('L_p_x')
    e.I('s_sub_u32', 's40', 's21', 348)
    e.I('s_mul_i32', 's22', 's40', 16*896)
    e.I('v_mul_u32_u24', 'v8', 896, 'v3')
    e.I('v_lshl_add_u32', 'v8', 'v4', 3, 'v8')
    for ks in range(14):
        e.I('buffer_load_dwordx2', V(16+ks*4, 2), 'v8', 's[12:15]', 's22', mods='offen offset:%d' % (ks*64))
        e.I('buffer_load_dwordx2', V(16+ks*4+2, 2), 'v8', 's[12:15]', 's22', mods='offen offset:%d' % (ks*64+32))
    e.I('s_mul_i32', 's23', 's40', 14336)
    e.I('s_add_u32', 's23', 's23', XF0)
    for ks in range(14):
        if ks % 4 == 0 and ks: e.I('s_add_u32', 's23', 's23', 4096)
        e.I('buffer_store_dwordx4', V(16+ks*4, 4), 'v5', 's[8:11]', 's23', mods='offen offset:%d' % ((ks % 4)*1024) + STMOD)
    e.I('s_branch', 'L_end_%s' % name)

    e.label('L_p_wphi')
    e.I('s_sub_u32', 's40', 's21', 476)
    e.I('s_mul_i32', 's22', 's40', 8*1568)
    e.I('v_mul_u32_u24', 'v8', 4*56, 'v4')
    e.I('v_lshl_add_u32', 'v8', 'v3', 1, 'v8')
    e.I('v_mov_b32', 'v7', OOB)
    e.I('v_add_u32', 'v9', 16*56, 'v8')
    e.I('v_cmp_gt_u32', 'vcc', 3, 'v4')
    e.I('v_cndmask_b32', 'v9', 'v7', 'v9', 'vcc')
    e.I('v_add_u32', 'v10', 32, 'v8')
    e.I('v_add_u32', 'v11', 32, 'v9')
    e.I('v_cmp_gt_u32', 'vcc', 12, 'v3')
    e.I('v_cndmask_b32', 'v10', 'v7', 'v10', 'vcc')
    e.I('v_cndmask_b32', 'v11', 'v7', 'v11', 'vcc')
    for hh in range(8):
        for ft in range(2):
            for j in range(8):
                e.I('s_add_u32', 's23', 's22', hh*1568 + (j & 3)*56)
                voff = ['v8', 'v9', 'v10', 'v11'][ft*2 + (j >> 2)]
                e.I('buffer_load_ushort', V(96 + (hh*2+ft)*8 + j), voff, 's[24:27]', 's23', mods='offen')
    for fr in range(16):
        for q in range(4):
            e.I('v_lshl_or_b32', V(16 + fr*4 + q), V(96 + fr*8 + 2*q + 1), 16, V(96 + fr*8 + 2*q))
    e.I('s_lshl_b32', 's23', 's40', 14)
    e.I('s_add_u32', 's23', 's23', WPHI_P)
    for fr in range(16):
        if fr % 4 == 0 and fr: e.I('s_add_u32', 's23', 's23', 4096)
        e.I('buffer_store_dwordx4', V(16+fr*4, 4), 'v5', 's[8:11]', 's23', mods='offen offset:%d' % ((fr % 4)*1024))
    e.I('s_branch', 'L_end_%s' % name)

    e.label('L_p_zero')
    e.I('s_sub_u32', 's40', 's21', 478)
    e.I('s_lshl_b32', 's23', 's40', 14)
    e.I('s_add_u32', 's23', 's23', KVACC)
    for i in range(4): e.I('v_mov_b32', V(16+i), 0)
    for fr in range(16):
        if fr % 4 == 0 and fr: e.I('s_add_u32', 's23', 's23', 4096)
        e.I('buffer_store_dwordx4', V(16, 4), 'v5', 's[8:11]', 's23', mods='offen offset:%d' % ((fr % 4)*1024))
    e.label('L_k0_stamp')
    stamp(e, 1)
    if STAMPS: e.wait_all()
    stamp(e, 2); dump_stamps(e, 3)
    finish(e, name, NWG, 256, 0)

def gen_k1(name, XIN, KV):
    e = Emitter(); e.name = name
    prologue(e, 256, [])
    e.stampbase = 0x1E00000 + (0x40000 if name.startswith('k1b') else 0); stamp(e, 0)
    e.I('s_and_b32', 's26', 's2', 7); e.I('s_lshr_b32', 's27', 's2', 3)
    e.I('s_lshr_b32', 's21', 's26', 1); e.I('s_lshl_b32', 's21', 's21', 2); e.I('s_lshr_b32', 's28', 's27', 3); e.I('s_add_u32', 's21', 's21', 's28')
    e.I('s_and_b32', 's22', 's26', 1); e.I('s_lshl_b32', 's22', 's22', 3); e.I('s_and_b32', 's28', 's27', 7); e.I('s_add_u32', 's22', 's22', 's28')
    e.I('s_lshl_b32', 's23', 's21', 3)
    e.I('s_add_u32', 's23', 's23', 's20')
    XR = 16
    e.I('s_mul_i32', 's26', 's23', 14336)
    e.I('s_add_u32', 's26', 's26', XIN)
    e.I('s_mul_i32', 's24', 's22', 86016)
    e.I('s_lshl_b32', 's25', 's20', 10)
    e.I('s_add_u32', 's24', 's24', 's25')
    e.I('s_add_u32', 's24', 's24', WQKV_P)
    def dma(j):
        e.I('s_add_u32', 's28', 's25', j*8192)
        e.I('s_mov_b32', 'm0', 's28')
        if j == 10:
            e.I('s_min_u32', 's27', 's20', 3); e.I('s_lshl_b32', 's27', 's27', 10)
            e.I('s_sub_u32', 's27', 's27', 's25'); e.I('s_add_u32', 's27', 's27', 's24'); e.I('s_add_u32', 's27', 's27', j*8192)
        else:
            e.I('s_add_u32', 's27', 's24', j*8192)
        e.I('buffer_load_dwordx4', 'v5', 's[8:11]', 's27', mods='offen lds')
    marks = {}
    def group_ops(grp):
        ops = []
        for j in range(3*grp, min(3*grp+3, 11)):
            ops.append(lambda j=j: dma(j))
        for ks in range(4*grp, min(4*grp+4, 14)):
            def xl(ks=ks):
                e.I('s_add_u32', 's29', 's26', (ks//4)*4096)
                e.I('buffer_load_dwordx4', V(XR+ks*4, 4), 'v5', 's[8:11]', 's29', mods='offen offset:%d' % ((ks % 4)*1024))
            ops.append(xl)
        return ops
    for grp in range(2):
        for op in group_ops(grp): op()
        marks[grp] = e.vmc
    CSR = 156; CSV = 172; WPH = 176
    def small_ops():
        ops = []
        def a0():
            e.I('s_mul_i32', 's30', 's22', 384); e.I('s_add_u32', 's30', 's30', CSQKV)
            for t in range(4):
                e.I('buffer_load_dwordx4', V(CSR+4*t, 4), 'v6', 's[8:11]', 's30', mods='offen offset:%d' % (t*64))
        def a1():
            for t in range(2):
                e.I('buffer_load_dword', V(CSV+t), 'v7', 's[8:11]', 's30', mods='offen offset:%d' % (256+t*64))
            e.I('s_lshl_b32', 's30', 's22', 11); e.I('s_add_u32', 's30', 's30', WPHI_P)
            for ft in range(2):
                e.I('buffer_load_dwordx4', V(WPH+4*ft, 4), 'v5', 's[8:11]', 's30', mods='offen offset:%d' % (ft*1024))
        return [a0, a1]
    e.I('v_lshlrev_b32', 'v6', 4, 'v4')
    e.I('v_lshlrev_b32', 'v7', 2, 'v3')
    ONES = 152
    for i in range(4): e.I('v_mov_b32', V(ONES+i), 0x3f803f80)
    masks = diag_masks(e, 40)
    e.I('v_cmp_eq_u32', 's[48:49]', 3, 'v4')
    e.I('v_cmp_eq_u32', 's[50:51]', 12, 'v3')
    e.I('v_cmp_le_u32', 's[52:53]', 12, 'v3')
    e.I('v_add_u32', 'v8', 0x10000, 'v5')
    stamp(e, 1)
    BR = 72; ACC = 120
    def bread(ks):
        buf = BR + (ks & 1)*24
        for t in range(6):
            off = (ks*6+t)*1024
            if off < 65536: e.I('ds_read_b128', V(buf+4*t, 4), 'v5', mods='offset:%d' % off)
            else: e.I('ds_read_b128', V(buf+4*t, 4), 'v8', mods='offset:%d' % (off-65536))
    for grp in range(4):
        e.wait_mark(marks[grp])
        e.barrier()
        if grp == 0: stamp(e, 2)
        kss = list(range(4*grp, min(4*grp+4, 14)))
        pend = group_ops(grp+2) if grp+2 < 4 else (small_ops() if grp == 2 else [])
        bread(kss[0])
        for ks in kss:
            if ks+1 <= kss[-1]: bread(ks+1)
            buf = BR + (ks & 1)*24
            x = V(XR+ks*4, 4)
            def C(i): return V(ACC+4*i, 4) if ks else '0'
            e.I('v_mfma_f32_16x16x32_bf16', V(ACC+24, 4), V(ONES, 4), x, C(6))
            e.I('v_mfma_f32_16x16x32_bf16', V(ACC+28, 4), x, x, C(7))
            if pend: pend.pop(0)()
            for t in range(4):
                e.I('v_mfma_f32_16x16x32_bf16', V(ACC+4*t, 4), V(buf+4*t, 4), x, C(t))
                if t == 1 and pend: pend.pop(0)()
            for t in range(4, 6):
                e.I('v_mfma_f32_16x16x32_bf16', V(ACC+4*t, 4), x, V(buf+4*t, 4), C(t))
        while pend: pend.pop(0)()
        if grp+2 < 4: marks[grp+2] = e.vmc
    T = 184
    stamp(e, 3)
    vNM, vRS = V(T), V(T+1)
    ln_stats(e, ACC+24, ACC+28, vNM, vRS, V(T+2), V(T+3), masks)
    STAT = 0x16000
    e.I('s_lshl_b32', 's26', 's20', 7)
    e.I('s_add_u32', 's26', 's26', STAT)
    e.I('v_lshl_add_u32', 'v9', 'v3', 3, 's26')
    e.I('v_lshl_add_u32', 'v10', 'v4', 5, 's26')
    e.I('ds_write_b64', 'v9', V(T, 2))
    e.waitcnt(lg=0)
    e.I('ds_read_b128', V(T+4, 4), 'v10')
    e.I('ds_read_b128', V(T+8, 4), 'v10', mods='offset:16')
    QF = T+12; KF = T+16; TT = T+20
    for (t0, FR) in ((0, QF), (2, KF)):
        for t in range(2):
            for r in range(4):
                e.I('v_mul_f32', V(TT+4*t+r), vNM, V(CSR+4*(t0+t)+r))
            for r in range(4):
                e.I('v_fmac_f32', V(TT+4*t+r), V(ACC+4*(t0+t)+r), vRS)
            e.I('v_cvt_pk_bf16_f32', V(FR+2*t), V(TT+4*t), V(TT+4*t+1))
            e.I('v_cvt_pk_bf16_f32', V(FR+2*t+1), V(TT+4*t+2), V(TT+4*t+3))
    PQ = ACC; PK = ACC+8
    e.I('v_mfma_f32_16x16x32_bf16', V(PK, 4), V(KF, 4), V(WPH, 4), '0')
    e.I('v_mfma_f32_16x16x32_bf16', V(PK+4, 4), V(KF, 4), V(WPH+4, 4), '0')
    e.I('v_mfma_f32_16x16x32_bf16', V(PQ, 4), V(WPH, 4), V(QF, 4), '0')
    e.I('v_mfma_f32_16x16x32_bf16', V(PQ+4, 4), V(WPH+4, 4), V(QF, 4), '0')
    VF = T+28
    for t in range(2):
        for r in range(4):
            nm = V(T+4+2*r); rs = V(T+5+2*r)
            e.I('v_mul_f32', V(TT+4*t+r), nm, V(CSV+t))
            e.I('v_fmac_f32', V(TT+4*t+r), V(ACC+16+4*t+r), rs)
            if t == 1:
                e.I('v_cndmask_b32', V(TT+4+r), V(TT+4+r), 1.0, 's[50:51]')
        e.I('v_cvt_pk_bf16_f32', V(VF+2*t), V(TT+4*t), V(TT+4*t+1))
        e.I('v_cvt_pk_bf16_f32', V(VF+2*t+1), V(TT+4*t+2), V(TT+4*t+3))
    A = T+32
    e.I('v_mov_b32', V(A+8), 0xff7fffff); e.I('v_mov_b32', V(A+9), 0x7f7fffff)
    EP = [V(A+16+i) for i in range(8)]; EN = [V(A+24+i) for i in range(8)]
    e.I('s_mov_b32', 's26', LOG2E)
    Kp = [V(PK+i) for i in range(8)]
    bf16_roundtrip(e, Kp, A+32)
    KM = [V(A+i) for i in range(4)]; KN = [V(A+4+i) for i in range(4)]
    MX = [V(A+32+i) for i in range(4)]; MN = [V(A+36+i) for i in range(4)]
    for r in range(4):
        e.I('v_cndmask_b32', KM[r], Kp[4+r], V(A+8), 's[52:53]')
        e.I('v_cndmask_b32', KN[r], Kp[4+r], V(A+9), 's[52:53]')
    for r in range(4):
        e.I('v_max_f32', MX[r], Kp[r], KM[r]); e.I('v_min_f32', MN[r], Kp[r], KN[r])
    for sh in (8, 4, 2, 1):
        for r in range(4):
            e.I('v_max_f32_dpp', MX[r], MX[r], MX[r], mods='row_ror:%d row_mask:0xf bank_mask:0xf' % sh)
            e.I('v_min_f32_dpp', MN[r], MN[r], MN[r], mods='row_ror:%d row_mask:0xf bank_mask:0xf' % sh)
    for r in range(4):
        e.I('v_mul_f32', MX[r], LOG2E, MX[r]); e.I('v_mul_f32', MN[r], LOG2E, MN[r])
    for i in range(8):
        r = i & 3
        sp = Kp[i] if i < 4 else KM[r]; sn = Kp[i] if i < 4 else KN[r]
        e.I('v_fma_f32', EP[i], sp, 's26', '-' + MX[r])
        e.I('v_fma_f32', EN[i], '-' + sn, 's26', MN[r])
    for i in range(8):
        e.I('v_exp_f32', EP[i], EP[i]); e.I('v_exp_f32', EN[i], EN[i])
    for r in range(4):
        e.I('v_add_f32', MX[r], EP[r], EP[4+r]); e.I('v_add_f32', MN[r], EN[r], EN[4+r])
    for sh in (8, 4, 2, 1):
        for r in range(4):
            e.I('v_add_f32_dpp', MX[r], MX[r], MX[r], mods='row_ror:%d row_mask:0xf bank_mask:0xf' % sh)
            e.I('v_add_f32_dpp', MN[r], MN[r], MN[r], mods='row_ror:%d row_mask:0xf bank_mask:0xf' % sh)
    for r in range(4):
        e.I('v_rcp_f32', MX[r], MX[r]); e.I('v_rcp_f32', MN[r], MN[r])
    for i in range(8):
        e.I('v_mul_f32', EP[i], EP[i], MX[i & 3]); e.I('v_mul_f32', EN[i], EN[i], MN[i & 3])
    PF = BR
    for ft in range(2):
        e.I('v_cvt_pk_bf16_f32', V(PF+2*ft), EP[4*ft], EP[4*ft+1])
        e.I('v_cvt_pk_bf16_f32', V(PF+2*ft+1), EP[4*ft+2], EP[4*ft+3])
        e.I('v_cvt_pk_bf16_f32', V(PF+4+2*ft), EN[4*ft], EN[4*ft+1])
        e.I('v_cvt_pk_bf16_f32', V(PF+4+2*ft+1), EN[4*ft+2], EN[4*ft+3])
    XCH = 0x16400
    e.I('s_mul_i32', 's27', 's20', 3072); e.I('s_add_u32', 's27', 's27', XCH)
    e.I('v_lshl_add_u32', 'v9', 'v1', 3, 's27')
    for f in range(4):
        e.I('ds_write_b64', 'v9', V(PF+2*f, 2), mods='offset:%d' % (f*512))
    for dt in range(2):
        e.I('ds_write_b64', 'v9', V(VF+2*dt, 2), mods='offset:%d' % (2048+dt*512))
    P = [V(PQ+i) for i in range(8)]
    bf16_roundtrip(e, P, TT)
    PM = [V(A+i) for i in range(4)]; PN = [V(A+4+i) for i in range(4)]
    for r in range(4):
        e.I('v_cndmask_b32', PM[r], P[4+r], V(A+8), 's[48:49]')
        e.I('v_cndmask_b32', PN[r], P[4+r], V(A+9), 's[48:49]')
    mx, mn, tmp, tmp2 = V(A+10), V(A+11), V(A+12), V(A+15)
    e.I('v_max3_f32', mx, P[0], P[1], P[2]); e.I('v_min3_f32', mn, P[0], P[1], P[2])
    e.I('v_max3_f32', mx, mx, P[3], PM[0]); e.I('v_min3_f32', mn, mn, P[3], PN[0])
    e.I('v_max3_f32', mx, mx, PM[1], PM[2]); e.I('v_min3_f32', mn, mn, PN[1], PN[2])
    e.I('v_max_f32', mx, mx, PM[3]); e.I('v_min_f32', mn, mn, PN[3])
    e.waitcnt(lg=0)
    e.barrier()
    e.I('s_and_b32', 's27', 's20', 3); e.I('s_lshl_b32', 's27', 's27', 9)
    e.I('s_lshr_b32', 's28', 's20', 2); e.I('s_lshl_b32', 's28', 's28', 9); e.I('s_add_u32', 's28', 's28', 2048)
    e.I('s_add_u32', 's27', 's27', XCH); e.I('s_add_u32', 's28', 's28', XCH)
    e.I('v_lshl_add_u32', 'v9', 'v1', 3, 's27'); e.I('v_lshl_add_u32', 'v10', 'v1', 3, 's28')
    KA = BR+16; KB = BR+32
    for w in range(8):
        e.I('ds_read_b64', V(KA+2*w, 2), 'v9', mods='offset:%d' % (w*3072))
        e.I('ds_read_b64', V(KB+2*w, 2), 'v10', mods='offset:%d' % (w*3072))
    xreduce2 = [(mx, 'v_max_f32', tmp), (mn, 'v_min_f32', tmp2)]
    for sw in ('v_permlane16_swap_b32', 'v_permlane32_swap_b32'):
        for (v, op, t_) in xreduce2: e.I('v_mov_b32', t_, v)
        for (v, op, t_) in xreduce2: e.I(sw, v, t_)
        for (v, op, t_) in xreduce2: e.I(op, v, v, t_)
    e.I('v_mul_f32', mx, LOG2E, mx); e.I('v_mul_f32', mn, LOG2E, mn)
    for i in range(8):
        sp = P[i] if i < 4 else PM[i-4]; sn = P[i] if i < 4 else PN[i-4]
        e.I('v_fma_f32', EP[i], sp, 's26', '-' + mx)
        e.I('v_fma_f32', EN[i], '-' + sn, 's26', mn)
    KVR = BR
    for w in range(8):
        e.I('v_mfma_f32_16x16x16_bf16', V(KVR, 4), V(KA+2*w, 2), V(KB+2*w, 2), V(KVR, 4) if w else '0')
    for i in range(8):
        e.I('v_exp_f32', EP[i], EP[i]); e.I('v_exp_f32', EN[i], EN[i])
    sp_, sn_ = V(A+13), V(A+14)
    e.I('v_add_f32', sp_, EP[0], EP[1]); e.I('v_add_f32', sn_, EN[0], EN[1])
    for i in range(2, 8):
        e.I('v_add_f32', sp_, sp_, EP[i]); e.I('v_add_f32', sn_, sn_, EN[i])
    e.I('s_lshl_b32', 's27', 's22', 13); e.I('s_lshl_b32', 's28', 's20', 10)
    e.I('s_add_u32', 's27', 's27', 's28'); e.I('s_add_u32', 's27', 's27', KV)
    e.I('v_lshlrev_b32', 'v9', 2, 'v1')
    stamp(e, 4)
    for r in range(4):
        e.I('buffer_atomic_add_f32', V(KVR+r), 'v9', 's[8:11]', 's27', mods='offen offset:%d' % (r*256))
    xreduce2 = [(sp_, 'v_add_f32', tmp), (sn_, 'v_add_f32', tmp2)]
    for sw in ('v_permlane16_swap_b32', 'v_permlane32_swap_b32'):
        for (v, op, t_) in xreduce2: e.I('v_mov_b32', t_, v)
        for (v, op, t_) in xreduce2: e.I(sw, v, t_)
        for (v, op, t_) in xreduce2: e.I(op, v, v, t_)
    e.I('v_rcp_f32', sp_, sp_); e.I('v_rcp_f32', sn_, sn_)
    for i in range(8):
        e.I('v_mul_f32', EP[i], EP[i], sp_); e.I('v_mul_f32', EN[i], EN[i], sn_)
    OQ = TT
    for i in range(4):
        e.I('v_cvt_pk_bf16_f32', V(OQ+i), EP[2*i], EP[2*i+1])
        e.I('v_cvt_pk_bf16_f32', V(OQ+4+i), EN[2*i], EN[2*i+1])
    e.I('s_lshl_b32', 's27', 's23', 4); e.I('s_add_u32', 's27', 's27', 's22')
    e.I('s_lshl_b32', 's27', 's27', 11); e.I('s_add_u32', 's27', 's27', PHIQ)
    e.I('buffer_store_dwordx4', V(OQ, 4), 'v5', 's[8:11]', 's27', mods='offen')
    e.I('buffer_store_dwordx4', V(OQ+4, 4), 'v5', 's[8:11]', 's27', mods='offen offset:1024')
    stamp(e, 5);
    if STAMPS: e.wait_all()
    stamp(e, 6); dump_stamps(e, 7)
    finish(e, name, 256, 512, 0x16400 + 8*3072)

def reduce_epilogue(e, ACC, XIN, XOUT, bias_srd, final_srd):
    RX = 200; RB = 204
    e.I('s_lshr_b32', 's26', 's20', 1)
    e.I('s_and_b32', 's27', 's20', 1)
    e.I('s_lshl_b32', 's28', 's21', 2); e.I('s_add_u32', 's28', 's28', 's26')
    e.I('s_lshl_b32', 's29', 's22', 1); e.I('s_add_u32', 's29', 's29', 's27')
    e.I('s_mul_i32', 's30', 's28', 14336); e.I('s_lshl_b32', 's31', 's29', 10)
    e.I('s_add_u32', 's30', 's30', 's31')
    e.I('s_add_u32', 's31', 's30', XIN)
    e.I('buffer_load_dwordx4', V(RX, 4), 'v5', 's[8:11]', 's31', mods='offen')
    if bias_srd is not None:
        e.I('v_lshlrev_b32', 'v6', 3, 'v4')
        e.I('s_lshl_b32', 's31', 's29', 6)
        e.I('buffer_load_dwordx2', V(RB, 2), 'v6', Sg(bias_srd, 4), 's31', mods='offen')
        e.I('buffer_load_dwordx2', V(RB+2, 2), 'v6', Sg(bias_srd, 4), 's31', mods='offen offset:32')
    e.I('s_lshl_b32', 's31', 's20', 14)
    e.I('v_add_u32', 'v9', 's31', 'v5')
    for i in range(16):
        e.I('ds_write_b128', 'v9', V(ACC+4*i, 4), mods='offset:%d' % (i*1024))
    e.waitcnt(lg=0)
    e.barrier()
    e.I('s_lshl_b32', 's31', 's26', 12); e.I('s_lshl_b32', 's26', 's27', 11); e.I('s_add_u32', 's31', 's31', 's26')
    e.I('v_add_u32', 'v9', 's31', 'v5')
    e.I('v_add_u32', 'v10', 0x10000, 'v9')
    R = 16
    for w in range(8):
        a, o = ('v9', w*16384) if w < 4 else ('v10', (w-4)*16384)
        e.I('ds_read_b128', V(R+8*w, 4), a, mods='offset:%d' % o)
        e.I('ds_read_b128', V(R+8*w+4, 4), a, mods='offset:%d' % (o+1024))
    for w in range(1, 8):
        for r in range(8):
            e.I('v_add_f32', V(R+r), V(R+r), V(R+8*w+r))
    Sm = [V(R+r) for r in range(8)]
    T = R+8
    bf16_roundtrip(e, Sm, T)
    if bias_srd is not None:
        for q in range(4):
            e.I('v_lshlrev_b32', V(T+2*q), 16, V(RB+q)); e.I('v_and_b32', V(T+2*q+1), 0xffff0000, V(RB+q))
        for r in range(8): e.I('v_add_f32', Sm[r], Sm[r], V(T+r))
        bf16_roundtrip(e, Sm, T)
    for q in range(4):
        e.I('v_lshlrev_b32', V(T+2*q), 16, V(RX+q)); e.I('v_and_b32', V(T+2*q+1), 0xffff0000, V(RX+q))
    for r in range(8): e.I('v_add_f32', Sm[r], Sm[r], V(T+r))
    for q in range(4):
        e.I('v_cvt_pk_bf16_f32', V(T+8+q), Sm[2*q], Sm[2*q+1])
    if final_srd is None:
        e.I('s_add_u32', 's31', 's30', XOUT)
        e.I('buffer_store_dwordx4', V(T+8, 4), 'v5', 's[8:11]', 's31', mods='offen')
    else:
        e.I('v_mul_u32_u24', 'v6', 896, 'v3')
        e.I('v_lshl_add_u32', 'v6', 'v4', 3, 'v6')
        e.I('s_mul_i32', 's31', 's28', 16*896); e.I('s_lshl_b32', 's26', 's29', 6); e.I('s_add_u32', 's31', 's31', 's26')
        e.I('buffer_store_dwordx2', V(T+8, 2), 'v6', Sg(final_srd, 4), 's31', mods='offen')
        e.I('buffer_store_dwordx2', V(T+10, 2), 'v6', Sg(final_srd, 4), 's31', mods='offen offset:32')

def split_wg_64(e):
    e.I('s_and_b32', 's26', 's2', 7); e.I('s_lshr_b32', 's27', 's2', 3)
    e.I('s_mul_i32', 's28', 's27', 37); e.I('s_lshr_b32', 's28', 's28', 8)
    e.I('s_mul_i32', 's22', 's28', 7); e.I('s_sub_u32', 's22', 's27', 's22')
    e.I('s_lshl_b32', 's21', 's26', 2); e.I('s_add_u32', 's21', 's21', 's28')

def gen_k2(name, XIN, XOUT, KV):
    e = Emitter(); e.name = name
    prologue(e, 224, [])
    split_wg_64(e)
    e.stampbase = 0x1E00000 + 0x8000*1 + (0x40000 if name.startswith('k2b') else 0); stamp(e, 0)
    e.I('v_lshlrev_b32', 'v7', 2, 'v1')
    e.I('v_cmp_eq_u32', 's[48:49]', 3, 'v4')
    ACC = 64
    KVF = 128
    PQ = 192
    WOF = 16
    NUM = 48
    for hh in range(2):
        e.I('s_lshl_b32', 's26', 's20', 1); e.I('s_add_u32', 's26', 's26', hh)
        e.I('s_lshl_b32', 's27', 's26', 13); e.I('s_add_u32', 's27', 's27', KV)
        for i in range(32):
            if i == 16: e.I('s_add_u32', 's27', 's27', 4096)
            e.I('buffer_load_dword', V(KVF+32*hh+i), 'v7', 's[8:11]', 's27', mods='offen offset:%d' % ((i % 16)*256))
        e.I('s_lshl_b32', 's27', 's21', 2+4+11)
        e.I('s_lshl_b32', 's28', 's26', 11); e.I('s_add_u32', 's27', 's27', 's28'); e.I('s_add_u32', 's27', 's27', PHIQ)
        for tt in range(4):
            if tt: e.I('s_add_u32', 's27', 's27', 32768)
            for ks in range(2):
                e.I('buffer_load_dwordx4', V(PQ+32*hh+8*tt+4*ks, 4), 'v5', 's[8:11]', 's27', mods='offen offset:%d' % (ks*1024))
        e.I('s_lshl_b32', 's27', 's22', 2+14)
        e.I('s_lshl_b32', 's28', 's26', 10); e.I('s_add_u32', 's27', 's27', 's28'); e.I('s_add_u32', 's27', 's27', WO_P)
        for nt in range(4):
            if nt: e.I('s_add_u32', 's27', 's27', 16384)
            e.I('buffer_load_dwordx4', V(WOF+16*hh+4*nt, 4), 'v5', 's[8:11]', 's27', mods='offen')
    stamp(e, 1)
    for hh in range(2):
        kb = KVF+32*hh
        for fr in range(4):
            for q in range(4):
                e.I('v_cvt_pk_bf16_f32', V(kb+4*fr+q), V(kb+8*fr+2*q), V(kb+8*fr+2*q+1))
        for half in range(2):
            for t2 in range(2):
                tt = 2*half+t2
                for dt in range(2):
                    for ks in range(2):
                        d = V(NUM+8*t2+4*dt, 4)
                        e.I('v_mfma_f32_16x16x32_bf16', d, V(kb+4*(dt*2+ks), 4), V(PQ+32*hh+8*tt+4*ks, 4), d if ks else '0')
            OF = kb+16
            TMP = kb+24
            for t2 in range(2):
                N = [V(NUM+8*t2+i) for i in range(8)]
                bf16_roundtrip(e, N, TMP)
                den = V(TMP+4); t1 = V(TMP+5)
                e.I('v_cndmask_b32', den, 0, N[4], 's[48:49]')
                xreduce(e, 'v_add_f32', den, t1)
                e.I('v_add_f32', den, 0x358637bd, den)
                e.I('v_cvt_pk_bf16_f32', den, den, den)
                e.I('v_lshlrev_b32', den, 16, den)
                e.I('v_rcp_f32', den, den)
                for i in range(8): e.I('v_mul_f32', N[i], N[i], den)
                for q in range(4):
                    e.I('v_cvt_pk_bf16_f32', V(OF+4*t2+q), N[2*q], N[2*q+1])
            for t2 in range(2):
                tt = 2*half+t2
                for nt in range(4):
                    d = V(ACC+4*(tt*4+nt), 4)
                    e.I('v_mfma_f32_16x16x32_bf16', d, V(WOF+16*hh+4*nt, 4), V(OF+4*t2, 4), d if hh else '0')
    reduce_epilogue(e, ACC, XIN, XOUT, None, None)
    stamp(e, 3); e.wait_all(); stamp(e, 4); dump_stamps(e, 5)
    finish(e, name, 224, 512, 0x20000)

def gen_k3(name, XIN):
    e = Emitter(); e.name = name
    prologue(e, 224, [(48, 12, F*2)])
    e.stampbase = 0x1E00000 + 0x8000*2 + (0x40000 if name.startswith('k3b') else 0); stamp(e, 0)
    e.I('s_and_b32', 's26', 's2', 7); e.I('s_lshr_b32', 's27', 's2', 3)
    e.I('s_mul_i32', 's28', 's27', 37); e.I('s_lshr_b32', 's28', 's28', 8)
    e.I('s_mul_i32', 's29', 's28', 7); e.I('s_sub_u32', 's29', 's27', 's29')
    e.I('s_lshr_b32', 's21', 's26', 1); e.I('s_lshl_b32', 's21', 's21', 2); e.I('s_add_u32', 's21', 's21', 's28')
    e.I('s_and_b32', 's22', 's26', 1); e.I('s_mul_i32', 's22', 's22', 7); e.I('s_add_u32', 's22', 's22', 's29')
    e.I('s_lshl_b32', 's23', 's21', 3)
    e.I('s_add_u32', 's23', 's23', 's20')
    e.I('s_mul_i32', 's24', 's22', 14*8192)
    e.I('s_lshl_b32', 's25', 's20', 10)
    e.I('s_add_u32', 's24', 's24', 's25')
    e.I('s_add_u32', 's24', 's24', W1_P)
    XR = 16
    e.I('s_mul_i32', 's26', 's23', 14336)
    e.I('s_add_u32', 's26', 's26', XIN)
    groups = [(2*i, 2*i+2) for i in range(7)]
    PRE = 3
    marks = {}
    def group_ops(gi):
        ops = []
        for ks in range(*groups[gi]):
            def d(ks=ks):
                e.I('s_add_u32', 's28', 's25', ks*8192)
                e.I('s_mov_b32', 'm0', 's28')
                e.I('s_add_u32', 's27', 's24', ks*8192)
                e.I('buffer_load_dwordx4', 'v5', 's[8:11]', 's27', mods='offen lds')
            def xl(ks=ks):
                e.I('s_add_u32', 's29', 's26', (ks//4)*4096)
                e.I('buffer_load_dwordx4', V(XR+ks*4, 4), 'v5', 's[8:11]', 's29', mods='offen offset:%d' % ((ks % 4)*1024))
            ops += [d, xl]
        return ops
    for gi in range(PRE):
        for op in group_ops(gi): op()
        marks[gi] = e.vmc
    CSR = 180; B1R = 212
    e.I('v_lshlrev_b32', 'v6', 4, 'v4')
    e.I('v_lshlrev_b32', 'v7', 3, 'v4')
    e.I('s_lshl_b32', 's30', 's22', 9); e.I('s_add_u32', 's30', 's30', CS1)
    e.I('s_lshl_b32', 's31', 's22', 8)
    def small_ops(half):
        ops = []
        for t in range(4*half, 4*half+4):
            def a(t=t):
                e.I('buffer_load_dwordx4', V(CSR+4*t, 4), 'v6', 's[8:11]', 's30', mods='offen offset:%d' % (t*64))
                e.I('buffer_load_dwordx2', V(B1R+2*t, 2), 'v7', 's[12:15]', 's31', mods='offen offset:%d' % (t*32))
            ops.append(a)
        return ops
    ONES = 176
    for i in range(4): e.I('v_mov_b32', V(ONES+i), 0x3f803f80)
    masks = diag_masks(e, 40)
    e.I('v_add_u32', 'v8', 0x10000, 'v5')
    stamp(e, 1)
    BR = 72; ACC = 136
    def bread(ks):
        buf = BR + (ks & 1)*32
        for t in range(8):
            off = (ks*8+t)*1024
            if off < 65536: e.I('ds_read_b128', V(buf+4*t, 4), 'v5', mods='offset:%d' % off)
            else: e.I('ds_read_b128', V(buf+4*t, 4), 'v8', mods='offset:%d' % (off-65536))
    for gi, (k0, k1) in enumerate(groups):
        e.wait_mark(marks[gi])
        e.barrier()
        if gi == 0: stamp(e, 2)
        if gi+PRE < len(groups): pend = group_ops(gi+PRE)
        elif gi+PRE-len(groups) < 2: pend = small_ops(gi+PRE-len(groups))
        else: pend = []
        bread(k0)
        for ks in range(k0, k1):
            if ks+1 < k1: bread(ks+1)
            buf = BR + (ks & 1)*32
            x = V(XR+ks*4, 4)
            def C(i): return V(ACC+4*i, 4) if ks else '0'
            e.I('v_mfma_f32_16x16x32_bf16', V(ACC+32, 4), V(ONES, 4), x, C(8))
            e.I('v_mfma_f32_16x16x32_bf16', V(ACC+36, 4), x, x, C(9))
            if pend: pend.pop(0)()
            for t in range(8):
                e.I('v_mfma_f32_16x16x32_bf16', V(ACC+4*t, 4), V(buf+4*t, 4), x, C(t))
                if t == 3 and pend: pend.pop(0)()
        while pend: pend.pop(0)()
        if gi+PRE < len(groups): marks[gi+PRE] = e.vmc
    T = 228
    stamp(e, 3)
    vNM, vRS = V(T), V(T+1)
    ln_stats(e, ACC+32, ACC+36, vNM, vRS, V(T+2), V(T+3), masks)
    e.I('s_mul_i32', 's26', 's23', 56*1024); e.I('s_lshl_b32', 's27', 's22', 12)
    e.I('s_add_u32', 's26', 's26', 's27'); e.I('s_add_u32', 's26', 's26', HF)
    e.I('s_mov_b32', 's34', 0x3d372713)
    e.I('s_mov_b32', 's35', 0xc0135761)
    W = 16
    for p in range(4):
        Hh = [V(W+16*(p % 2)+r) for r in range(8)]
        U = [V(W+16*(p % 2)+8+r) for r in range(8)]
        for r in range(8): e.I('v_mul_f32', Hh[r], vNM, V(CSR+8*p+r))
        for r in range(8): e.I('v_fmac_f32', Hh[r], V(ACC+8*p+r), vRS)
        bf16_roundtrip(e, Hh, T+4)
        for q in range(4):
            e.I('v_lshlrev_b32', U[2*q], 16, V(B1R+4*p+q)); e.I('v_and_b32', U[2*q+1], 0xffff0000, V(B1R+4*p+q))
        for r in range(8): e.I('v_add_f32', Hh[r], Hh[r], U[r])
        bf16_roundtrip(e, Hh, T+4)
        for r in range(8): e.I('v_mul_f32', U[r], Hh[r], Hh[r])
        for r in range(8): e.I('v_fma_f32', U[r], U[r], 's34', 1.0)
        for r in range(8): e.I('v_mul_f32', U[r], U[r], Hh[r])
        for r in range(8): e.I('v_mul_f32', U[r], 's35', U[r])
        for r in range(8): e.I('v_exp_f32', U[r], U[r])
        for r in range(8): e.I('v_add_f32', U[r], 1.0, U[r])
        for r in range(8): e.I('v_rcp_f32', U[r], U[r])
        for r in range(8): e.I('v_mul_f32', Hh[r], Hh[r], U[r])
        O = T+8+4*(p % 2)
        for q in range(4): e.I('v_cvt_pk_bf16_f32', V(O+q), Hh[2*q], Hh[2*q+1])
        e.I('buffer_store_dwordx4', V(O, 4), 'v5', 's[8:11]', 's26', mods='offen offset:%d' % (p*1024) + STMOD)
    stamp(e, 4)
    if STAMPS: e.wait_all()
    stamp(e, 5); dump_stamps(e, 6)
    finish(e, name, 224, 512, 14*8192)

def gen_k4(name, XIN, XOUT, final):
    e = Emitter(); e.name = name
    ptrs = [(64, 12, D*2)]
    if final: ptrs.append((72, 16, S*D*2))
    prologue(e, 224, ptrs)
    split_wg_64(e)
    e.stampbase = 0x1E00000 + 0x8000*3 + (0x40000 if name.startswith('k4b') else 0); stamp(e, 0)
    ACC = 16
    AR = 80
    BRg = 144
    e.I('s_mul_i32', 's26', 's22', 4*56*1024); e.I('s_mul_i32', 's27', 's20', 7*1024)
    e.I('s_add_u32', 's26', 's26', 's27'); e.I('s_add_u32', 's26', 's26', W2_P)
    e.I('s_mul_i32', 's28', 's21', 4*56*1024); e.I('s_add_u32', 's28', 's28', 's27'); e.I('s_add_u32', 's28', 's28', HF)
    def loads(k):
        sl = k % 4
        for i in range(4):
            e.I('s_add_u32', 's29', 's28', i*56*1024 + k*1024)
            e.I('buffer_load_dwordx4', V(BRg+16*sl+4*i, 4), 'v5', 's[8:11]', 's29', mods='offen')
            e.I('s_add_u32', 's29', 's26', i*56*1024 + k*1024)
            e.I('buffer_load_dwordx4', V(AR+16*sl+4*i, 4), 'v5', 's[8:11]', 's29', mods='offen')
    for k in range(4): loads(k)
    stamp(e, 1)
    for k in range(7):
        sl = k % 4
        for tt in range(4):
            for nt in range(4):
                d = V(ACC+4*(tt*4+nt), 4)
                e.I('v_mfma_f32_16x16x32_bf16', d, V(AR+16*sl+4*nt, 4), V(BRg+16*sl+4*tt, 4), d if k else '0')
        if k+4 < 7: loads(k+4)
    e.I('s_nop', 7); e.I('s_nop', 7); stamp(e, 2)
    reduce_epilogue(e, ACC, XIN, XOUT, 12, 16 if final else None)
    stamp(e, 3); e.wait_all(); stamp(e, 4); dump_stamps(e, 5)
    finish(e, name, 224, 512, 0x20000)

def build():
    gen_k0()
    gen_k1('k1a_kernel', XF0, KVACC)
    gen_k2('k2a_kernel', XF0, XF1, KVACC)
    gen_k3('k3a_kernel', XF1)
    gen_k4('k4a_kernel', XF1, XF2, False)
    gen_k1('k1b_kernel', XF2, KVACC+0x20000)
    gen_k2('k2b_kernel', XF2, XF3, KVACC+0x20000)
    gen_k3('k3b_kernel', XF3)
    gen_k4('k4b_kernel', XF3, None, True)
    out = []
    hdr = open('cdna_kernels/%s.s.ref' % KNAME[:-7]).read().split('\n')
    for l in hdr:
        if l.startswith('; Override') : break
        out.append(l)
    for (name, grid, block, lds, text, mv, ms, ni) in kernels:
        out.append('; @launch kernel=%s grid=(%d,1,1) block=(%d,1,1) lds=%d' % (name, grid, block, lds))
    out.append('.amdgcn_target "amdgcn-amd-amdhsa--gfx950"')
    out.append('.text')
    for (name, grid, block, lds, text, mv, ms, ni) in kernels:
        out.append('.globl %s' % name)
        out.append('.p2align 8')
        out.append('.type %s,@function' % name)
        out.append('%s:' % name)
        out.append(text)
    out.append('.section .rodata,"a"')
    for (name, grid, block, lds, text, mv, ms, ni) in kernels:
        nv = ((mv + 1 + 7)//8)*8
        out.append('.p2align 6')
        out.append('.amdhsa_kernel %s' % name)
        out.append('  .amdhsa_next_free_vgpr %d' % nv)
        out.append('  .amdhsa_next_free_sgpr %d' % max(ms+1, 16))
        out.append('  .amdhsa_accum_offset %d' % nv)
        out.append('  .amdhsa_group_segment_fixed_size 0')
        out.append('  .amdhsa_kernarg_size 96')
        out.append('  .amdhsa_user_sgpr_count 2')
        out.append('  .amdhsa_user_sgpr_kernarg_segment_ptr 1')
        out.append('  .amdhsa_system_sgpr_workgroup_id_x 1')
        out.append('.end_amdhsa_kernel')
        sys.stderr.write('%s: %d instr, vgpr %d sgpr %d\n' % (name, ni, mv+1, ms+1))
    return '\n'.join(out) + '\n'

if __name__ == '__main__':
    if len(sys.argv) > 2: STAMPS = True
    txt = build()
    open(sys.argv[1], 'w').write(txt)
```

```python
import sys
from emit import Emitter
from layout import *

KNAME = 'interleave_layers__linear_kernel_hedgehog__dense_activation_gelu__prompt_kernel'
LOG2E = 0x3fb8aa3b
kernels = []

def V(i, n=1):
    return 'v%d' % i if n == 1 else 'v[%d:%d]' % (i, i+n-1)
def Sg(i, n=1):
    return 's%d' % i if n == 1 else 's[%d:%d]' % (i, i+n-1)

def prologue(e, nwg, ptrs):
    e.I('s_cmp_ge_u32', 's2', nwg)
    e.I('s_cbranch_scc1', 'L_end_%s' % e.name)
    if STAMPS: e.I('s_memrealtime', 's[90:91]')
    e.I('s_load_dwordx2', 's[4:5]', 's[0:1]', 88)
    tmp = 28
    for (off, srd, nb) in ptrs:
        e.I('s_load_dwordx2', Sg(srd, 2), 's[0:1]', off)
    e.I('v_and_b32', 'v1', 63, 'v0')
    e.I('v_lshrrev_b32', 'v2', 6, 'v0')
    e.I('v_readfirstlane_b32', 's20', 'v2')
    e.I('v_and_b32', 'v3', 15, 'v1')
    e.I('v_lshrrev_b32', 'v4', 4, 'v1')
    e.I('v_lshlrev_b32', 'v5', 4, 'v1')
    e.waitcnt(lg=0)
    e.I('s_mov_b32', 's8', 's4')
    e.I('s_and_b32', 's9', 's5', 0xffff)
    e.I('s_mov_b32', 's10', WS_BYTES)
    e.I('s_mov_b32', 's11', 0x20000)
    for (off, srd, nb) in ptrs:
        e.I('s_and_b32', Sg(srd+1), Sg(srd+1), 0xffff)
        e.I('s_mov_b32', Sg(srd+2), nb)
        e.I('s_mov_b32', Sg(srd+3), 0x20000)

STAMPS = False
KIDX = {'prep_kernel': 0, 'k1a_kernel': 1, 'k2a_kernel': 2, 'k3a_kernel': 3, 'k4a_kernel': 4, 'k1b_kernel': 5, 'k2b_kernel': 6, 'k3b_kernel': 7, 'k4b_kernel': 8}
STMOD = ' sc1'
STMOD0 = ''
def stamp(e, idx):
    if not STAMPS: return
    e.I('s_memtime', Sg(60+2*idx, 2))
    e.waitcnt(lg=0)
def dump_stamps(e, n):
    if not STAMPS: return
    e.I('s_lshl_b32', 's26', 's2', 3); e.I('s_add_u32', 's26', 's26', 's20')
    e.I('s_lshl_b32', 's26', 's26', 6); e.I('s_add_u32', 's26', 's26', 0x2000000 + KIDX[e.name]*0x40000)
    e.I('v_mov_b32', 'v6', 0)
    for i in range(n):
        e.I('v_mov_b32', 'v7', Sg(60+2*i))
        e.I('buffer_store_dword', 'v7', 'v6', 's[8:11]', 's26', mods='offen offset:%d' % (4*i))
    e.I('s_memrealtime', 's[92:93]')
    e.I('v_mov_b32', 'v7', 's90'); e.I('buffer_store_dword', 'v7', 'v6', 's[8:11]', 's26', mods='offen offset:56')
    e.I('v_mov_b32', 'v7', 's92'); e.I('buffer_store_dword', 'v7', 'v6', 's[8:11]', 's26', mods='offen offset:60')

def finish(e, name, grid, block, lds):
    e.label('L_end_%s' % name)
    e.raw('    s_endpgm')
    kernels.append((name, grid, block, lds, e.text(), e.max_v, e.max_s, e.ninstr))

def xreduce(e, op, v, tmp):
    e.I('v_mov_b32', tmp, v); e.I('v_permlane16_swap_b32', v, tmp); e.I(op, v, v, tmp)
    e.I('v_mov_b32', tmp, v); e.I('v_permlane32_swap_b32', v, tmp); e.I(op, v, v, tmp)

def rowreduce(e, op, regs):
    for sh in (8, 4, 2, 1):
        for r in regs:
            e.I(op + '_dpp', r, r, r, mods='row_ror:%d row_mask:0xf bank_mask:0xf' % sh)

def bf16_roundtrip(e, regs, tmpbase):
    for i in range(0, len(regs), 2):
        t = V(tmpbase + i//2)
        e.I('v_cvt_pk_bf16_f32', t, regs[i], regs[i+1])
    for i in range(0, len(regs), 2):
        t = V(tmpbase + i//2)
        e.I('v_lshlrev_b32', regs[i], 16, t)
        e.I('v_and_b32', regs[i+1], 0xffff0000, t)

def ln_stats(e, aS1, aS2, vmean_n, vrstd, t0, t1, masks):
    sD1, sD2, sD3, sDg = masks
    e.I('v_cndmask_b32', t0, V(aS2), V(aS2+1), sD1)
    e.I('v_cndmask_b32', t0, t0, V(aS2+2), sD2)
    e.I('v_cndmask_b32', t0, t0, V(aS2+3), sD3)
    e.I('v_cndmask_b32', t0, 0, t0, sDg)
    xreduce(e, 'v_add_f32', t0, t1)
    inv = 0x3b124925
    e.I('v_mul_f32', t1, inv, V(aS1))
    e.I('v_mul_f32', t0, inv, t0)
    e.I('v_fma_f32', t0, '-' + t1, t1, t0)
    e.I('v_max_f32', t0, 0, t0)
    e.I('v_add_f32', t0, 0x3727c5ac, t0)
    e.I('v_rsq_f32', vrstd, t0)
    e.I('v_mul_f32', vmean_n, t1, vrstd)
    e.I('v_sub_f32', vmean_n, 0, vmean_n)

def diag_masks(e, base):
    e.I('v_and_b32', 'v12', 3, 'v3')
    e.I('v_lshrrev_b32', 'v13', 2, 'v3')
    e.I('v_cmp_eq_u32', Sg(base, 2), 1, 'v12')
    e.I('v_cmp_eq_u32', Sg(base+2, 2), 2, 'v12')
    e.I('v_cmp_eq_u32', Sg(base+4, 2), 3, 'v12')
    e.I('v_cmp_eq_u32', Sg(base+6, 2), 'v4', 'v13')
    return [Sg(base+2*i, 2) for i in range(4)]

def gen_k0():
    name = 'prep_kernel'
    e = Emitter(); e.name = name
    NJOB = 494
    NWG = (NJOB + 3)//4
    prologue(e, NWG, [(0, 12, S*D*2), (8, 16, D*3*D*2), (16, 24, H*DH*DH*2), (24, 28, D*D*2),
                      (40, 32, D*F*2), (56, 36, F*D*2)])
    e.stampbase = 0x1E80000; stamp(e, 0)
    e.I('s_lshl_b32', 's21', 's2', 2)
    e.I('s_add_u32', 's21', 's21', 's20')
    OOB = 0x40000000
    def pack(srd, stride, nks, ksrow, outbase, s_idx, colsum_base, gvalid_hi, s_out=None, ksmul=1024):
        R = 16; R2 = 96
        for ks in range(nks):
            for j in range(8):
                e.I('s_add_u32', 's23', 's22', (ksrow*ks + (j & 3))*stride)
                e.I('buffer_load_ushort', V(R2 + ks*8 + j), 'v8' if j < 4 else 'v9', Sg(srd, 4), 's23', mods='offen')
        for ks in range(nks):
            for q in range(4):
                e.I('v_lshl_or_b32', V(R + ks*4 + q), V(R2 + ks*8 + 2*q + 1), 16, V(R2 + ks*8 + 2*q))
        if s_out is None:
            e.I('s_mul_i32', 's23', s_idx, nks*1024)
            e.I('s_add_u32', 's23', 's23', outbase)
        else:
            e.I('s_add_u32', 's23', s_out, outbase)
        if colsum_base is not None:
            e.I('v_mov_b32', 'v10', 0)
        for ks in range(nks):
            if ks: e.I('s_add_u32', 's23', 's23', ksmul)
            e.I('buffer_store_dwordx4', V(R+ks*4, 4), 'v5', 's[8:11]', 's23', mods='offen' + STMOD0)
            if colsum_base is not None:
                for q in range(4):
                    e.I('v_lshlrev_b32', 'v11', 16, V(R+ks*4+q))
                    e.I('v_and_b32', 'v12', 0xffff0000, V(R+ks*4+q))
                    e.I('v_add_f32', 'v10', 'v10', 'v11')
                    e.I('v_add_f32', 'v10', 'v10', 'v12')
        if colsum_base is not None:
            xreduce(e, 'v_add_f32', 'v10', 'v11')
            e.I('v_lshlrev_b32', 'v11', 2, 'v3')
            e.I('s_lshl_b32', 's23', s_idx, 6)
            e.I('s_add_u32', 's23', 's23', colsum_base)
            e.I('buffer_store_dword', 'v10', 'v11', 's[8:11]', 's23', mods='offen')
        e.I('s_branch', 'L_k0_stamp')

    e.I('s_cmp_lt_u32', 's21', 96);  e.I('s_cbranch_scc1', 'L_p_wqkv')
    e.I('s_cmp_lt_u32', 's21', 208); e.I('s_cbranch_scc1', 'L_p_w1')
    e.I('s_cmp_lt_u32', 's21', 320); e.I('s_cbranch_scc1', 'L_p_w2')
    e.I('s_cmp_lt_u32', 's21', 348); e.I('s_cbranch_scc1', 'L_p_wo')
    e.I('s_cmp_lt_u32', 's21', 476); e.I('s_cbranch_scc1', 'L_p_x')
    e.I('s_cmp_lt_u32', 's21', 478); e.I('s_cbranch_scc1', 'L_p_wphi')
    e.I('s_cmp_lt_u32', 's21', 494); e.I('s_cbranch_scc1', 'L_p_zero')
    e.I('s_branch', 'L_end_%s' % name)

    e.label('L_p_wqkv')
    e.I('s_mul_i32', 's40', 's21', 43); e.I('s_lshr_b32', 's40', 's40', 8)
    e.I('s_mul_i32', 's41', 's40', 6); e.I('s_sub_u32', 's41', 's21', 's41')
    e.I('s_lshr_b32', 's42', 's41', 1)
    e.I('s_and_b32', 's43', 's41', 1)
    e.I('s_mul_i32', 's44', 's42', 448); e.I('s_mul_i32', 's45', 's40', 28)
    e.I('s_add_u32', 's44', 's44', 's45'); e.I('s_lshl_b32', 's45', 's43', 4)
    e.I('s_add_u32', 's44', 's44', 's45')
    e.I('s_lshl_b32', 's22', 's44', 1)
    e.I('v_add_u32', 'v6', 's45', 'v3')
    e.I('v_cmp_gt_u32', 'vcc', 28, 'v6')
    e.I('s_mov_b32', 's46', 4*2688)
    e.I('v_mul_lo_u32', 'v8', 's46', 'v4')
    e.I('v_lshl_add_u32', 'v8', 'v3', 1, 'v8')
    e.I('v_mov_b32', 'v7', OOB)
    e.I('v_cndmask_b32', 'v8', 'v7', 'v8', 'vcc')
    e.I('v_add_u32', 'v9', 16*2688, 'v8')
    e.I('s_mul_i32', 's47', 's40', 86016); e.I('s_lshl_b32', 's46', 's41', 10); e.I('s_add_u32', 's47', 's47', 's46')
    pack(16, 2688, 14, 32, WQKV_P, 's21', CSQKV, None, 's47', 6144)

    e.label('L_p_w1')
    e.I('s_sub_u32', 's40', 's21', 96)
    e.I('s_lshl_b32', 's22', 's40', 5)
    e.I('s_mov_b32', 's46', 4*3584)
    e.I('v_mul_lo_u32', 'v8', 's46', 'v4')
    e.I('v_lshl_add_u32', 'v8', 'v3', 1, 'v8')
    e.I('v_add_u32', 'v9', 16*3584, 'v8')
    e.I('s_lshr_b32', 's47', 's40', 3); e.I('s_mul_i32', 's47', 's47', 14*8192)
    e.I('s_and_b32', 's46', 's40', 7); e.I('s_lshl_b32', 's46', 's46', 10); e.I('s_add_u32', 's47', 's47', 's46')
    pack(32, 3584, 14, 32, W1_P, 's40', CS1, None, 's47', 8192)

    e.label('L_p_w2')
    e.I('s_sub_u32', 's40', 's21', 208)
    e.I('s_lshr_b32', 's41', 's40', 2)
    e.I('s_and_b32', 's42', 's40', 3)
    e.I('s_lshl_b32', 's22', 's41', 5)
    e.I('s_mul_i32', 's43', 's42', 448*896)
    e.I('s_add_u32', 's22', 's22', 's43')
    e.I('s_mov_b32', 's46', 4*896)
    e.I('v_mul_lo_u32', 'v8', 's46', 'v4')
    e.I('v_lshl_add_u32', 'v8', 'v3', 1, 'v8')
    e.I('v_add_u32', 'v9', 16*896, 'v8')
    pack(36, 896, 14, 32, W2_P, 's40', None, None)

    e.label('L_p_wo')
    e.I('s_sub_u32', 's40', 's21', 320)
    e.I('s_lshl_b32', 's22', 's40', 5)
    e.I('s_mov_b32', 's46', 4*896)
    e.I('v_mul_lo_u32', 'v8', 's46', 'v4')
    e.I('v_lshl_add_u32', 'v8', 'v3', 1, 'v8')
    e.I('v_add_u32', 'v9', 16*896, 'v8')
    e.I('v_cmp_gt_u32', 'vcc', 3, 'v4')
    e.I('v_mov_b32', 'v7', OOB)
    e.I('v_cndmask_b32', 'v9', 'v7', 'v9', 'vcc')
    pack(28, 896, 16, 28, WO_P, 's40', None, None)

    e.label('L_p_x')
    e.I('s_sub_u32', 's40', 's21', 348)
    e.I('s_mul_i32', 's22', 's40', 16*896)
    e.I('v_mul_u32_u24', 'v8', 896, 'v3')
    e.I('v_lshl_add_u32', 'v8', 'v4', 3, 'v8')
    for ks in range(14):
        e.I('buffer_load_dwordx2', V(16+ks*4, 2), 'v8', 's[12:15]', 's22', mods='offen offset:%d' % (ks*64))
        e.I('buffer_load_dwordx2', V(16+ks*4+2, 2), 'v8', 's[12:15]', 's22', mods='offen offset:%d' % (ks*64+32))
    e.I('s_mul_i32', 's23', 's40', 14336)
    e.I('s_add_u32', 's23', 's23', XF0)
    for ks in range(14):
        if ks % 4 == 0 and ks: e.I('s_add_u32', 's23', 's23', 4096)
        e.I('buffer_store_dwordx4', V(16+ks*4, 4), 'v5', 's[8:11]', 's23', mods='offen offset:%d' % ((ks % 4)*1024) + STMOD0)
    e.I('s_branch', 'L_end_%s' % name)

    e.label('L_p_wphi')
    e.I('s_sub_u32', 's40', 's21', 476)
    e.I('s_mul_i32', 's22', 's40', 8*1568)
    e.I('v_mul_u32_u24', 'v8', 4*56, 'v4')
    e.I('v_lshl_add_u32', 'v8', 'v3', 1, 'v8')
    e.I('v_mov_b32', 'v7', OOB)
    e.I('v_add_u32', 'v9', 16*56, 'v8')
    e.I('v_cmp_gt_u32', 'vcc', 3, 'v4')
    e.I('v_cndmask_b32', 'v9', 'v7', 'v9', 'vcc')
    e.I('v_add_u32', 'v10', 32, 'v8')
    e.I('v_add_u32', 'v11', 32, 'v9')
    e.I('v_cmp_gt_u32', 'vcc', 12, 'v3')
    e.I('v_cndmask_b32', 'v10', 'v7', 'v10', 'vcc')
    e.I('v_cndmask_b32', 'v11', 'v7', 'v11', 'vcc')
    for hh in range(8):
        for ft in range(2):
            for j in range(8):
                e.I('s_add_u32', 's23', 's22', hh*1568 + (j & 3)*56)
                voff = ['v8', 'v9', 'v10', 'v11'][ft*2 + (j >> 2)]
                e.I('buffer_load_ushort', V(96 + (hh*2+ft)*8 + j), voff, 's[24:27]', 's23', mods='offen')
    for fr in range(16):
        for q in range(4):
            e.I('v_lshl_or_b32', V(16 + fr*4 + q), V(96 + fr*8 + 2*q + 1), 16, V(96 + fr*8 + 2*q))
    e.I('s_lshl_b32', 's23', 's40', 14)
    e.I('s_add_u32', 's23', 's23', WPHI_P)
    for fr in range(16):
        if fr % 4 == 0 and fr: e.I('s_add_u32', 's23', 's23', 4096)
        e.I('buffer_store_dwordx4', V(16+fr*4, 4), 'v5', 's[8:11]', 's23', mods='offen offset:%d' % ((fr % 4)*1024))
    e.I('s_branch', 'L_end_%s' % name)

    e.label('L_p_zero')
    e.I('s_sub_u32', 's40', 's21', 478)
    e.I('s_lshl_b32', 's23', 's40', 14)
    e.I('s_add_u32', 's23', 's23', KVACC)
    for i in range(4): e.I('v_mov_b32', V(16+i), 0)
    for fr in range(16):
        if fr % 4 == 0 and fr: e.I('s_add_u32', 's23', 's23', 4096)
        e.I('buffer_store_dwordx4', V(16, 4), 'v5', 's[8:11]', 's23', mods='offen offset:%d' % ((fr % 4)*1024))
    e.label('L_k0_stamp')
    stamp(e, 1)
    if STAMPS: e.wait_all()
    stamp(e, 2); dump_stamps(e, 3)
    finish(e, name, NWG, 256, 0)

def gen_k1(name, XIN, KV):
    e = Emitter(); e.name = name
    prologue(e, 256, [])
    e.stampbase = 0x1E00000 + (0x40000 if name.startswith('k1b') else 0); stamp(e, 0)
    e.I('s_and_b32', 's26', 's2', 7); e.I('s_lshr_b32', 's27', 's2', 3)
    e.I('s_lshr_b32', 's21', 's26', 1); e.I('s_lshl_b32', 's21', 's21', 2); e.I('s_lshr_b32', 's28', 's27', 3); e.I('s_add_u32', 's21', 's21', 's28')
    e.I('s_and_b32', 's22', 's26', 1); e.I('s_lshl_b32', 's22', 's22', 3); e.I('s_and_b32', 's28', 's27', 7); e.I('s_add_u32', 's22', 's22', 's28')
    e.I('s_lshl_b32', 's23', 's21', 3)
    e.I('s_add_u32', 's23', 's23', 's20')
    XR = 16
    e.I('s_mul_i32', 's26', 's23', 14336)
    e.I('s_add_u32', 's26', 's26', XIN)
    e.I('s_mul_i32', 's24', 's22', 86016)
    e.I('s_lshl_b32', 's25', 's20', 10)
    e.I('s_add_u32', 's24', 's24', 's25')
    e.I('s_add_u32', 's24', 's24', WQKV_P)
    def dma(j):
        e.I('s_add_u32', 's28', 's25', j*8192)
        e.I('s_mov_b32', 'm0', 's28')
        if j == 10:
            e.I('s_min_u32', 's27', 's20', 3); e.I('s_lshl_b32', 's27', 's27', 10)
            e.I('s_sub_u32', 's27', 's27', 's25'); e.I('s_add_u32', 's27', 's27', 's24'); e.I('s_add_u32', 's27', 's27', j*8192)
        else:
            e.I('s_add_u32', 's27', 's24', j*8192)
        e.I('buffer_load_dwordx4', 'v5', 's[8:11]', 's27', mods='offen lds')
    marks = {}
    def group_ops(grp):
        ops = []
        for j in range(3*grp, min(3*grp+3, 11)):
            ops.append(lambda j=j: dma(j))
        for ks in range(4*grp, min(4*grp+4, 14)):
            def xl(ks=ks):
                e.I('s_add_u32', 's29', 's26', (ks//4)*4096)
                e.I('buffer_load_dwordx4', V(XR+ks*4, 4), 'v5', 's[8:11]', 's29', mods='offen offset:%d' % ((ks % 4)*1024))
            ops.append(xl)
        return ops
    for grp in range(2):
        for op in group_ops(grp): op()
        marks[grp] = e.vmc
    CSR = 156; CSV = 172; WPH = 176
    def small_ops():
        ops = []
        def a0():
            e.I('s_mul_i32', 's30', 's22', 384); e.I('s_add_u32', 's30', 's30', CSQKV)
            for t in range(4):
                e.I('buffer_load_dwordx4', V(CSR+4*t, 4), 'v6', 's[8:11]', 's30', mods='offen offset:%d' % (t*64))
        def a1():
            for t in range(2):
                e.I('buffer_load_dword', V(CSV+t), 'v7', 's[8:11]', 's30', mods='offen offset:%d' % (256+t*64))
            e.I('s_lshl_b32', 's30', 's22', 11); e.I('s_add_u32', 's30', 's30', WPHI_P)
            for ft in range(2):
                e.I('buffer_load_dwordx4', V(WPH+4*ft, 4), 'v5', 's[8:11]', 's30', mods='offen offset:%d' % (ft*1024))
        return [a0, a1]
    e.I('v_lshlrev_b32', 'v6', 4, 'v4')
    e.I('v_lshlrev_b32', 'v7', 2, 'v3')
    ONES = 152
    for i in range(4): e.I('v_mov_b32', V(ONES+i), 0x3f803f80)
    masks = diag_masks(e, 40)
    e.I('v_cmp_eq_u32', 's[48:49]', 3, 'v4')
    e.I('v_cmp_eq_u32', 's[50:51]', 12, 'v3')
    e.I('v_cmp_le_u32', 's[52:53]', 12, 'v3')
    e.I('v_add_u32', 'v8', 0x10000, 'v5')
    stamp(e, 1)
    BR = 72; ACC = 120
    def bread(ks):
        buf = BR + (ks & 1)*24
        for t in range(6):
            off = (ks*6+t)*1024
            if off < 65536: e.I('ds_read_b128', V(buf+4*t, 4), 'v5', mods='offset:%d' % off)
            else: e.I('ds_read_b128', V(buf+4*t, 4), 'v8', mods='offset:%d' % (off-65536))
    for grp in range(4):
        e.wait_mark(marks[grp])
        e.barrier()
        if grp == 0: stamp(e, 2)
        kss = list(range(4*grp, min(4*grp+4, 14)))
        pend = group_ops(grp+2) if grp+2 < 4 else (small_ops() if grp == 2 else [])
        bread(kss[0])
        for ks in kss:
            if ks+1 <= kss[-1]: bread(ks+1)
            buf = BR + (ks & 1)*24
            x = V(XR+ks*4, 4)
            def C(i): return V(ACC+4*i, 4) if ks else '0'
            e.I('v_mfma_f32_16x16x32_bf16', V(ACC+24, 4), V(ONES, 4), x, C(6))
            e.I('v_mfma_f32_16x16x32_bf16', V(ACC+28, 4), x, x, C(7))
            if pend: pend.pop(0)()
            for t in range(4):
                e.I('v_mfma_f32_16x16x32_bf16', V(ACC+4*t, 4), V(buf+4*t, 4), x, C(t))
                if t == 1 and pend: pend.pop(0)()
            for t in range(4, 6):
                e.I('v_mfma_f32_16x16x32_bf16', V(ACC+4*t, 4), x, V(buf+4*t, 4), C(t))
        while pend: pend.pop(0)()
        if grp+2 < 4: marks[grp+2] = e.vmc
    T = 184
    stamp(e, 3)
    vNM, vRS = V(T), V(T+1)
    ln_stats(e, ACC+24, ACC+28, vNM, vRS, V(T+2), V(T+3), masks)
    STAT = 0x16000
    e.I('s_lshl_b32', 's26', 's20', 7)
    e.I('s_add_u32', 's26', 's26', STAT)
    e.I('v_lshl_add_u32', 'v9', 'v3', 3, 's26')
    e.I('v_lshl_add_u32', 'v10', 'v4', 5, 's26')
    e.I('ds_write_b64', 'v9', V(T, 2))
    e.waitcnt(lg=0)
    e.I('ds_read_b128', V(T+4, 4), 'v10')
    e.I('ds_read_b128', V(T+8, 4), 'v10', mods='offset:16')
    QF = T+12; KF = T+16; TT = T+20
    for (t0, FR) in ((0, QF), (2, KF)):
        for t in range(2):
            for r in range(4):
                e.I('v_mul_f32', V(TT+4*t+r), vNM, V(CSR+4*(t0+t)+r))
            for r in range(4):
                e.I('v_fmac_f32', V(TT+4*t+r), V(ACC+4*(t0+t)+r), vRS)
            e.I('v_cvt_pk_bf16_f32', V(FR+2*t), V(TT+4*t), V(TT+4*t+1))
            e.I('v_cvt_pk_bf16_f32', V(FR+2*t+1), V(TT+4*t+2), V(TT+4*t+3))
    PQ = ACC; PK = ACC+8
    e.I('v_mfma_f32_16x16x32_bf16', V(PK, 4), V(KF, 4), V(WPH, 4), '0')
    e.I('v_mfma_f32_16x16x32_bf16', V(PK+4, 4), V(KF, 4), V(WPH+4, 4), '0')
    e.I('v_mfma_f32_16x16x32_bf16', V(PQ, 4), V(WPH, 4), V(QF, 4), '0')
    e.I('v_mfma_f32_16x16x32_bf16', V(PQ+4, 4), V(WPH+4, 4), V(QF, 4), '0')
    VF = T+28
    for t in range(2):
        for r in range(4):
            nm = V(T+4+2*r); rs = V(T+5+2*r)
            e.I('v_mul_f32', V(TT+4*t+r), nm, V(CSV+t))
            e.I('v_fmac_f32', V(TT+4*t+r), V(ACC+16+4*t+r), rs)
            if t == 1:
                e.I('v_cndmask_b32', V(TT+4+r), V(TT+4+r), 1.0, 's[50:51]')
        e.I('v_cvt_pk_bf16_f32', V(VF+2*t), V(TT+4*t), V(TT+4*t+1))
        e.I('v_cvt_pk_bf16_f32', V(VF+2*t+1), V(TT+4*t+2), V(TT+4*t+3))
    A = T+32
    e.I('v_mov_b32', V(A+8), 0xff7fffff); e.I('v_mov_b32', V(A+9), 0x7f7fffff)
    EP = [V(A+16+i) for i in range(8)]; EN = [V(A+24+i) for i in range(8)]
    e.I('s_mov_b32', 's26', LOG2E)
    Kp = [V(PK+i) for i in range(8)]
    bf16_roundtrip(e, Kp, A+32)
    KM = [V(A+i) for i in range(4)]; KN = [V(A+4+i) for i in range(4)]
    MX = [V(A+32+i) for i in range(4)]; MN = [V(A+36+i) for i in range(4)]
    for r in range(4):
        e.I('v_cndmask_b32', KM[r], Kp[4+r], V(A+8), 's[52:53]')
        e.I('v_cndmask_b32', KN[r], Kp[4+r], V(A+9), 's[52:53]')
    for r in range(4):
        e.I('v_max_f32', MX[r], Kp[r], KM[r]); e.I('v_min_f32', MN[r], Kp[r], KN[r])
    for sh in (8, 4, 2, 1):
        for r in range(4):
            e.I('v_max_f32_dpp', MX[r], MX[r], MX[r], mods='row_ror:%d row_mask:0xf bank_mask:0xf' % sh)
            e.I('v_min_f32_dpp', MN[r], MN[r], MN[r], mods='row_ror:%d row_mask:0xf bank_mask:0xf' % sh)
    for r in range(4):
        e.I('v_mul_f32', MX[r], LOG2E, MX[r]); e.I('v_mul_f32', MN[r], LOG2E, MN[r])
    for i in range(8):
        r = i & 3
        sp = Kp[i] if i < 4 else KM[r]; sn = Kp[i] if i < 4 else KN[r]
        e.I('v_fma_f32', EP[i], sp, 's26', '-' + MX[r])
        e.I('v_fma_f32', EN[i], '-' + sn, 's26', MN[r])
    for i in range(8):
        e.I('v_exp_f32', EP[i], EP[i]); e.I('v_exp_f32', EN[i], EN[i])
    for r in range(4):
        e.I('v_add_f32', MX[r], EP[r], EP[4+r]); e.I('v_add_f32', MN[r], EN[r], EN[4+r])
    for sh in (8, 4, 2, 1):
        for r in range(4):
            e.I('v_add_f32_dpp', MX[r], MX[r], MX[r], mods='row_ror:%d row_mask:0xf bank_mask:0xf' % sh)
            e.I('v_add_f32_dpp', MN[r], MN[r], MN[r], mods='row_ror:%d row_mask:0xf bank_mask:0xf' % sh)
    for r in range(4):
        e.I('v_rcp_f32', MX[r], MX[r]); e.I('v_rcp_f32', MN[r], MN[r])
    for i in range(8):
        e.I('v_mul_f32', EP[i], EP[i], MX[i & 3]); e.I('v_mul_f32', EN[i], EN[i], MN[i & 3])
    PF = BR
    for ft in range(2):
        e.I('v_cvt_pk_bf16_f32', V(PF+2*ft), EP[4*ft], EP[4*ft+1])
        e.I('v_cvt_pk_bf16_f32', V(PF+2*ft+1), EP[4*ft+2], EP[4*ft+3])
        e.I('v_cvt_pk_bf16_f32', V(PF+4+2*ft), EN[4*ft], EN[4*ft+1])
        e.I('v_cvt_pk_bf16_f32', V(PF+4+2*ft+1), EN[4*ft+2], EN[4*ft+3])
    XCH = 0x16400
    e.I('s_mul_i32', 's27', 's20', 3072); e.I('s_add_u32', 's27', 's27', XCH)
    e.I('v_lshl_add_u32', 'v9', 'v1', 3, 's27')
    for f in range(4):
        e.I('ds_write_b64', 'v9', V(PF+2*f, 2), mods='offset:%d' % (f*512))
    for dt in range(2):
        e.I('ds_write_b64', 'v9', V(VF+2*dt, 2), mods='offset:%d' % (2048+dt*512))
    P = [V(PQ+i) for i in range(8)]
    bf16_roundtrip(e, P, TT)
    PM = [V(A+i) for i in range(4)]; PN = [V(A+4+i) for i in range(4)]
    for r in range(4):
        e.I('v_cndmask_b32', PM[r], P[4+r], V(A+8), 's[48:49]')
        e.I('v_cndmask_b32', PN[r], P[4+r], V(A+9), 's[48:49]')
    mx, mn, tmp, tmp2 = V(A+10), V(A+11), V(A+12), V(A+15)
    e.I('v_max3_f32', mx, P[0], P[1], P[2]); e.I('v_min3_f32', mn, P[0], P[1], P[2])
    e.I('v_max3_f32', mx, mx, P[3], PM[0]); e.I('v_min3_f32', mn, mn, P[3], PN[0])
    e.I('v_max3_f32', mx, mx, PM[1], PM[2]); e.I('v_min3_f32', mn, mn, PN[1], PN[2])
    e.I('v_max_f32', mx, mx, PM[3]); e.I('v_min_f32', mn, mn, PN[3])
    e.waitcnt(lg=0)
    e.barrier()
    e.I('s_and_b32', 's27', 's20', 3); e.I('s_lshl_b32', 's27', 's27', 9)
    e.I('s_lshr_b32', 's28', 's20', 2); e.I('s_lshl_b32', 's28', 's28', 9); e.I('s_add_u32', 's28', 's28', 2048)
    e.I('s_add_u32', 's27', 's27', XCH); e.I('s_add_u32', 's28', 's28', XCH)
    e.I('v_lshl_add_u32', 'v9', 'v1', 3, 's27'); e.I('v_lshl_add_u32', 'v10', 'v1', 3, 's28')
    KA = BR+16; KB = BR+32
    for w in range(8):
        e.I('ds_read_b64', V(KA+2*w, 2), 'v9', mods='offset:%d' % (w*3072))
        e.I('ds_read_b64', V(KB+2*w, 2), 'v10', mods='offset:%d' % (w*3072))
    xreduce2 = [(mx, 'v_max_f32', tmp), (mn, 'v_min_f32', tmp2)]
    for sw in ('v_permlane16_swap_b32', 'v_permlane32_swap_b32'):
        for (v, op, t_) in xreduce2: e.I('v_mov_b32', t_, v)
        for (v, op, t_) in xreduce2: e.I(sw, v, t_)
        for (v, op, t_) in xreduce2: e.I(op, v, v, t_)
    e.I('v_mul_f32', mx, LOG2E, mx); e.I('v_mul_f32', mn, LOG2E, mn)
    for i in range(8):
        sp = P[i] if i < 4 else PM[i-4]; sn = P[i] if i < 4 else PN[i-4]
        e.I('v_fma_f32', EP[i], sp, 's26', '-' + mx)
        e.I('v_fma_f32', EN[i], '-' + sn, 's26', mn)
    KVR = BR
    for w in range(8):
        e.I('v_mfma_f32_16x16x16_bf16', V(KVR, 4), V(KA+2*w, 2), V(KB+2*w, 2), V(KVR, 4) if w else '0')
    for i in range(8):
        e.I('v_exp_f32', EP[i], EP[i]); e.I('v_exp_f32', EN[i], EN[i])
    sp_, sn_ = V(A+13), V(A+14)
    e.I('v_add_f32', sp_, EP[0], EP[1]); e.I('v_add_f32', sn_, EN[0], EN[1])
    for i in range(2, 8):
        e.I('v_add_f32', sp_, sp_, EP[i]); e.I('v_add_f32', sn_, sn_, EN[i])
    e.I('s_lshl_b32', 's27', 's22', 13); e.I('s_lshl_b32', 's28', 's20', 10)
    e.I('s_add_u32', 's27', 's27', 's28'); e.I('s_add_u32', 's27', 's27', KV)
    e.I('v_lshlrev_b32', 'v9', 2, 'v1')
    stamp(e, 4)
    for r in range(4):
        e.I('buffer_atomic_add_f32', V(KVR+r), 'v9', 's[8:11]', 's27', mods='offen offset:%d' % (r*256))
    xreduce2 = [(sp_, 'v_add_f32', tmp), (sn_, 'v_add_f32', tmp2)]
    for sw in ('v_permlane16_swap_b32', 'v_permlane32_swap_b32'):
        for (v, op, t_) in xreduce2: e.I('v_mov_b32', t_, v)
        for (v, op, t_) in xreduce2: e.I(sw, v, t_)
        for (v, op, t_) in xreduce2: e.I(op, v, v, t_)
    e.I('v_rcp_f32', sp_, sp_); e.I('v_rcp_f32', sn_, sn_)
    for i in range(8):
        e.I('v_mul_f32', EP[i], EP[i], sp_); e.I('v_mul_f32', EN[i], EN[i], sn_)
    OQ = TT
    for i in range(4):
        e.I('v_cvt_pk_bf16_f32', V(OQ+i), EP[2*i], EP[2*i+1])
        e.I('v_cvt_pk_bf16_f32', V(OQ+4+i), EN[2*i], EN[2*i+1])
    e.I('s_lshl_b32', 's27', 's23', 4); e.I('s_add_u32', 's27', 's27', 's22')
    e.I('s_lshl_b32', 's27', 's27', 11); e.I('s_add_u32', 's27', 's27', PHIQ)
    e.I('buffer_store_dwordx4', V(OQ, 4), 'v5', 's[8:11]', 's27', mods='offen')
    e.I('buffer_store_dwordx4', V(OQ+4, 4), 'v5', 's[8:11]', 's27', mods='offen offset:1024')
    stamp(e, 5);
    if STAMPS: e.wait_all()
    stamp(e, 6); dump_stamps(e, 7)
    finish(e, name, 256, 512, 0x16400 + 8*3072)

def reduce_epilogue(e, ACC, XIN, XOUT, bias_srd, final_srd):
    RX = 200; RB = 204
    e.I('s_lshr_b32', 's26', 's20', 1)
    e.I('s_and_b32', 's27', 's20', 1)
    e.I('s_lshl_b32', 's28', 's21', 2); e.I('s_add_u32', 's28', 's28', 's26')
    e.I('s_lshl_b32', 's29', 's22', 1); e.I('s_add_u32', 's29', 's29', 's27')
    e.I('s_mul_i32', 's30', 's28', 14336); e.I('s_lshl_b32', 's31', 's29', 10)
    e.I('s_add_u32', 's30', 's30', 's31')
    e.I('s_add_u32', 's31', 's30', XIN)
    e.I('buffer_load_dwordx4', V(RX, 4), 'v5', 's[8:11]', 's31', mods='offen')
    if bias_srd is not None:
        e.I('v_lshlrev_b32', 'v6', 3, 'v4')
        e.I('s_lshl_b32', 's31', 's29', 6)
        e.I('buffer_load_dwordx2', V(RB, 2), 'v6', Sg(bias_srd, 4), 's31', mods='offen')
        e.I('buffer_load_dwordx2', V(RB+2, 2), 'v6', Sg(bias_srd, 4), 's31', mods='offen offset:32')
    e.I('s_lshl_b32', 's31', 's20', 14)
    e.I('v_add_u32', 'v9', 's31', 'v5')
    for i in range(16):
        e.I('ds_write_b128', 'v9', V(ACC+4*i, 4), mods='offset:%d' % (i*1024))
    e.waitcnt(lg=0)
    stamp(e, 5)
    e.barrier()
    stamp(e, 6)
    e.I('s_lshl_b32', 's31', 's26', 12); e.I('s_lshl_b32', 's26', 's27', 11); e.I('s_add_u32', 's31', 's31', 's26')
    e.I('v_add_u32', 'v9', 's31', 'v5')
    e.I('v_add_u32', 'v10', 0x10000, 'v9')
    R = 16
    for w in range(8):
        a, o = ('v9', w*16384) if w < 4 else ('v10', (w-4)*16384)
        e.I('ds_read_b128', V(R+8*w, 4), a, mods='offset:%d' % o)
        e.I('ds_read_b128', V(R+8*w+4, 4), a, mods='offset:%d' % (o+1024))
    for w in range(1, 8):
        for r in range(8):
            e.I('v_add_f32', V(R+r), V(R+r), V(R+8*w+r))
    Sm = [V(R+r) for r in range(8)]
    T = R+8
    bf16_roundtrip(e, Sm, T)
    if bias_srd is not None:
        for q in range(4):
            e.I('v_lshlrev_b32', V(T+2*q), 16, V(RB+q)); e.I('v_and_b32', V(T+2*q+1), 0xffff0000, V(RB+q))
        for r in range(8): e.I('v_add_f32', Sm[r], Sm[r], V(T+r))
        bf16_roundtrip(e, Sm, T)
    for q in range(4):
        e.I('v_lshlrev_b32', V(T+2*q), 16, V(RX+q)); e.I('v_and_b32', V(T+2*q+1), 0xffff0000, V(RX+q))
    for r in range(8): e.I('v_add_f32', Sm[r], Sm[r], V(T+r))
    for q in range(4):
        e.I('v_cvt_pk_bf16_f32', V(T+8+q), Sm[2*q], Sm[2*q+1])
    if final_srd is None:
        e.I('s_add_u32', 's31', 's30', XOUT)
        e.I('buffer_store_dwordx4', V(T+8, 4), 'v5', 's[8:11]', 's31', mods='offen')
    else:
        e.I('v_mul_u32_u24', 'v6', 896, 'v3')
        e.I('v_lshl_add_u32', 'v6', 'v4', 3, 'v6')
        e.I('s_mul_i32', 's31', 's28', 16*896); e.I('s_lshl_b32', 's26', 's29', 6); e.I('s_add_u32', 's31', 's31', 's26')
        e.I('buffer_store_dwordx2', V(T+8, 2), 'v6', Sg(final_srd, 4), 's31', mods='offen')
        e.I('buffer_store_dwordx2', V(T+10, 2), 'v6', Sg(final_srd, 4), 's31', mods='offen offset:32')

def split_wg_64(e):
    e.I('s_and_b32', 's26', 's2', 7); e.I('s_lshr_b32', 's27', 's2', 3)
    e.I('s_mul_i32', 's28', 's27', 37); e.I('s_lshr_b32', 's28', 's28', 8)
    e.I('s_mul_i32', 's22', 's28', 7); e.I('s_sub_u32', 's22', 's27', 's22')
    e.I('s_lshl_b32', 's21', 's26', 2); e.I('s_add_u32', 's21', 's21', 's28')

def gen_k2(name, XIN, XOUT, KV):
    e = Emitter(); e.name = name
    prologue(e, 224, [])
    split_wg_64(e)
    e.stampbase = 0x1E00000 + 0x8000*1 + (0x40000 if name.startswith('k2b') else 0); stamp(e, 0)
    e.I('v_lshlrev_b32', 'v7', 2, 'v1')
    e.I('v_cmp_eq_u32', 's[48:49]', 3, 'v4')
    ACC = 64
    KVF = 128
    PQ = 192
    WOF = 16
    NUM = 48
    for hh in range(2):
        e.I('s_lshl_b32', 's26', 's20', 1); e.I('s_add_u32', 's26', 's26', hh)
        e.I('s_lshl_b32', 's27', 's26', 13); e.I('s_add_u32', 's27', 's27', KV)
        for i in range(32):
            if i == 16: e.I('s_add_u32', 's27', 's27', 4096)
            e.I('buffer_load_dword', V(KVF+32*hh+i), 'v7', 's[8:11]', 's27', mods='offen offset:%d' % ((i % 16)*256))
        e.I('s_lshl_b32', 's27', 's21', 2+4+11)
        e.I('s_lshl_b32', 's28', 's26', 11); e.I('s_add_u32', 's27', 's27', 's28'); e.I('s_add_u32', 's27', 's27', PHIQ)
        for tt in range(4):
            if tt: e.I('s_add_u32', 's27', 's27', 32768)
            for ks in range(2):
                e.I('buffer_load_dwordx4', V(PQ+32*hh+8*tt+4*ks, 4), 'v5', 's[8:11]', 's27', mods='offen offset:%d' % (ks*1024))
        e.I('s_lshl_b32', 's27', 's22', 2+14)
        e.I('s_lshl_b32', 's28', 's26', 10); e.I('s_add_u32', 's27', 's27', 's28'); e.I('s_add_u32', 's27', 's27', WO_P)
        for nt in range(4):
            if nt: e.I('s_add_u32', 's27', 's27', 16384)
            e.I('buffer_load_dwordx4', V(WOF+16*hh+4*nt, 4), 'v5', 's[8:11]', 's27', mods='offen')
    stamp(e, 1)
    for hh in range(2):
        kb = KVF+32*hh
        for fr in range(4):
            for q in range(4):
                e.I('v_cvt_pk_bf16_f32', V(kb+4*fr+q), V(kb+8*fr+2*q), V(kb+8*fr+2*q+1))
        for half in range(2):
            for t2 in range(2):
                tt = 2*half+t2
                for dt in range(2):
                    for ks in range(2):
                        d = V(NUM+8*t2+4*dt, 4)
                        e.I('v_mfma_f32_16x16x32_bf16', d, V(kb+4*(dt*2+ks), 4), V(PQ+32*hh+8*tt+4*ks, 4), d if ks else '0')
            OF = kb+16
            TMP = kb+24
            for t2 in range(2):
                N = [V(NUM+8*t2+i) for i in range(8)]
                bf16_roundtrip(e, N, TMP)
                den = V(TMP+4); t1 = V(TMP+5)
                e.I('v_cndmask_b32', den, 0, N[4], 's[48:49]')
                xreduce(e, 'v_add_f32', den, t1)
                e.I('v_add_f32', den, 0x358637bd, den)
                e.I('v_cvt_pk_bf16_f32', den, den, den)
                e.I('v_lshlrev_b32', den, 16, den)
                e.I('v_rcp_f32', den, den)
                for i in range(8): e.I('v_mul_f32', N[i], N[i], den)
                for q in range(4):
                    e.I('v_cvt_pk_bf16_f32', V(OF+4*t2+q), N[2*q], N[2*q+1])
            for t2 in range(2):
                tt = 2*half+t2
                for nt in range(4):
                    d = V(ACC+4*(tt*4+nt), 4)
                    e.I('v_mfma_f32_16x16x32_bf16', d, V(WOF+16*hh+4*nt, 4), V(OF+4*t2, 4), d if hh else '0')
    e.I('s_nop', 7); e.I('s_nop', 7); stamp(e, 2)
    reduce_epilogue(e, ACC, XIN, XOUT, None, None)
    stamp(e, 3); e.wait_all(); stamp(e, 4); dump_stamps(e, 7)
    finish(e, name, 224, 512, 0x20000)

def gen_k3(name, XIN):
    e = Emitter(); e.name = name
    prologue(e, 224, [(48, 12, F*2)])
    e.stampbase = 0x1E00000 + 0x8000*2 + (0x40000 if name.startswith('k3b') else 0); stamp(e, 0)
    e.I('s_and_b32', 's26', 's2', 7); e.I('s_lshr_b32', 's27', 's2', 3)
    e.I('s_mul_i32', 's28', 's27', 37); e.I('s_lshr_b32', 's28', 's28', 8)
    e.I('s_mul_i32', 's29', 's28', 7); e.I('s_sub_u32', 's29', 's27', 's29')
    e.I('s_lshr_b32', 's21', 's26', 1); e.I('s_lshl_b32', 's21', 's21', 2); e.I('s_add_u32', 's21', 's21', 's28')
    e.I('s_and_b32', 's22', 's26', 1); e.I('s_mul_i32', 's22', 's22', 7); e.I('s_add_u32', 's22', 's22', 's29')
    e.I('s_lshl_b32', 's23', 's21', 3)
    e.I('s_add_u32', 's23', 's23', 's20')
    e.I('s_mul_i32', 's24', 's22', 14*8192)
    e.I('s_lshl_b32', 's25', 's20', 10)
    e.I('s_add_u32', 's24', 's24', 's25')
    e.I('s_add_u32', 's24', 's24', W1_P)
    XR = 16
    e.I('s_mul_i32', 's26', 's23', 14336)
    e.I('s_add_u32', 's26', 's26', XIN)
    groups = [(2*i, 2*i+2) for i in range(7)]
    PRE = 3
    marks = {}
    def group_ops(gi):
        ops = []
        for ks in range(*groups[gi]):
            def d(ks=ks):
                e.I('s_add_u32', 's28', 's25', ks*8192)
                e.I('s_mov_b32', 'm0', 's28')
                e.I('s_add_u32', 's27', 's24', ks*8192)
                e.I('buffer_load_dwordx4', 'v5', 's[8:11]', 's27', mods='offen lds')
            def xl(ks=ks):
                e.I('s_add_u32', 's29', 's26', (ks//4)*4096)
                e.I('buffer_load_dwordx4', V(XR+ks*4, 4), 'v5', 's[8:11]', 's29', mods='offen offset:%d' % ((ks % 4)*1024))
            ops += [d, xl]
        return ops
    for gi in range(PRE):
        for op in group_ops(gi): op()
        marks[gi] = e.vmc
    CSR = 180; B1R = 212
    e.I('v_lshlrev_b32', 'v6', 4, 'v4')
    e.I('v_lshlrev_b32', 'v7', 3, 'v4')
    e.I('s_lshl_b32', 's30', 's22', 9); e.I('s_add_u32', 's30', 's30', CS1)
    e.I('s_lshl_b32', 's31', 's22', 8)
    def small_ops(half):
        ops = []
        for t in range(4*half, 4*half+4):
            def a(t=t):
                e.I('buffer_load_dwordx4', V(CSR+4*t, 4), 'v6', 's[8:11]', 's30', mods='offen offset:%d' % (t*64))
                e.I('buffer_load_dwordx2', V(B1R+2*t, 2), 'v7', 's[12:15]', 's31', mods='offen offset:%d' % (t*32))
            ops.append(a)
        return ops
    ONES = 176
    for i in range(4): e.I('v_mov_b32', V(ONES+i), 0x3f803f80)
    masks = diag_masks(e, 40)
    e.I('v_add_u32', 'v8', 0x10000, 'v5')
    stamp(e, 1)
    BR = 72; ACC = 136
    def bread(ks):
        buf = BR + (ks & 1)*32
        for t in range(8):
            off = (ks*8+t)*1024
            if off < 65536: e.I('ds_read_b128', V(buf+4*t, 4), 'v5', mods='offset:%d' % off)
            else: e.I('ds_read_b128', V(buf+4*t, 4), 'v8', mods='offset:%d' % (off-65536))
    for gi, (k0, k1) in enumerate(groups):
        e.wait_mark(marks[gi])
        e.barrier()
        if gi == 0: stamp(e, 2)
        if gi+PRE < len(groups): pend = group_ops(gi+PRE)
        elif gi+PRE-len(groups) < 2: pend = small_ops(gi+PRE-len(groups))
        else: pend = []
        bread(k0)
        for ks in range(k0, k1):
            if ks+1 < k1: bread(ks+1)
            buf = BR + (ks & 1)*32
            x = V(XR+ks*4, 4)
            def C(i): return V(ACC+4*i, 4) if ks else '0'
            e.I('v_mfma_f32_16x16x32_bf16', V(ACC+32, 4), V(ONES, 4), x, C(8))
            e.I('v_mfma_f32_16x16x32_bf16', V(ACC+36, 4), x, x, C(9))
            if pend: pend.pop(0)()
            for t in range(8):
                e.I('v_mfma_f32_16x16x32_bf16', V(ACC+4*t, 4), V(buf+4*t, 4), x, C(t))
                if t == 3 and pend: pend.pop(0)()
        while pend: pend.pop(0)()
        if gi+PRE < len(groups): marks[gi+PRE] = e.vmc
    T = 228
    stamp(e, 3)
    vNM, vRS = V(T), V(T+1)
    ln_stats(e, ACC+32, ACC+36, vNM, vRS, V(T+2), V(T+3), masks)
    e.I('s_mul_i32', 's26', 's23', 56*1024); e.I('s_lshl_b32', 's27', 's22', 12)
    e.I('s_add_u32', 's26', 's26', 's27'); e.I('s_add_u32', 's26', 's26', HF)
    e.I('s_mov_b32', 's34', 0x3d372713)
    e.I('s_mov_b32', 's35', 0xc0135761)
    W = 16
    for p in range(4):
        Hh = [V(W+16*(p % 2)+r) for r in range(8)]
        U = [V(W+16*(p % 2)+8+r) for r in range(8)]
        for r in range(8): e.I('v_mul_f32', Hh[r], vNM, V(CSR+8*p+r))
        for r in range(8): e.I('v_fmac_f32', Hh[r], V(ACC+8*p+r), vRS)
        bf16_roundtrip(e, Hh, T+4)
        for q in range(4):
            e.I('v_lshlrev_b32', U[2*q], 16, V(B1R+4*p+q)); e.I('v_and_b32', U[2*q+1], 0xffff0000, V(B1R+4*p+q))
        for r in range(8): e.I('v_add_f32', Hh[r], Hh[r], U[r])
        bf16_roundtrip(e, Hh, T+4)
        for r in range(8): e.I('v_mul_f32', U[r], Hh[r], Hh[r])
        for r in range(8): e.I('v_fma_f32', U[r], U[r], 's34', 1.0)
        for r in range(8): e.I('v_mul_f32', U[r], U[r], Hh[r])
        for r in range(8): e.I('v_mul_f32', U[r], 's35', U[r])
        for r in range(8): e.I('v_exp_f32', U[r], U[r])
        for r in range(8): e.I('v_add_f32', U[r], 1.0, U[r])
        for r in range(8): e.I('v_rcp_f32', U[r], U[r])
        for r in range(8): e.I('v_mul_f32', Hh[r], Hh[r], U[r])
        O = T+8+4*(p % 2)
        for q in range(4): e.I('v_cvt_pk_bf16_f32', V(O+q), Hh[2*q], Hh[2*q+1])
        e.I('buffer_store_dwordx4', V(O, 4), 'v5', 's[8:11]', 's26', mods='offen offset:%d' % (p*1024) + STMOD)
    stamp(e, 4)
    if STAMPS: e.wait_all()
    stamp(e, 5); dump_stamps(e, 6)
    finish(e, name, 224, 512, 14*8192)

def gen_k4(name, XIN, XOUT, final):
    e = Emitter(); e.name = name
    ptrs = [(64, 12, D*2)]
    if final: ptrs.append((72, 16, S*D*2))
    prologue(e, 224, ptrs)
    split_wg_64(e)
    e.stampbase = 0x1E00000 + 0x8000*3 + (0x40000 if name.startswith('k4b') else 0); stamp(e, 0)
    ACC = 16
    AR = 80
    BRg = 144
    e.I('s_mul_i32', 's26', 's22', 4*56*1024); e.I('s_mul_i32', 's27', 's20', 7*1024)
    e.I('s_add_u32', 's26', 's26', 's27'); e.I('s_add_u32', 's26', 's26', W2_P)
    e.I('s_mul_i32', 's28', 's21', 4*56*1024); e.I('s_add_u32', 's28', 's28', 's27'); e.I('s_add_u32', 's28', 's28', HF)
    def loads(k):
        sl = k % 4
        for i in range(4):
            e.I('s_add_u32', 's29', 's28', i*56*1024 + k*1024)
            e.I('buffer_load_dwordx4', V(BRg+16*sl+4*i, 4), 'v5', 's[8:11]', 's29', mods='offen')
            e.I('s_add_u32', 's29', 's26', i*56*1024 + k*1024)
            e.I('buffer_load_dwordx4', V(AR+16*sl+4*i, 4), 'v5', 's[8:11]', 's29', mods='offen')
    for k in range(4): loads(k)
    stamp(e, 1)
    for k in range(7):
        sl = k % 4
        for tt in range(4):
            for nt in range(4):
                d = V(ACC+4*(tt*4+nt), 4)
                e.I('v_mfma_f32_16x16x32_bf16', d, V(AR+16*sl+4*nt, 4), V(BRg+16*sl+4*tt, 4), d if k else '0')
        if k+4 < 7: loads(k+4)
    e.I('s_nop', 7); e.I('s_nop', 7); stamp(e, 2)
    reduce_epilogue(e, ACC, XIN, XOUT, 12, 16 if final else None)
    stamp(e, 3); e.wait_all(); stamp(e, 4); dump_stamps(e, 7)
    finish(e, name, 224, 512, 0x20000)

def build():
    gen_k0()
    gen_k1('k1a_kernel', XF0, KVACC)
    gen_k2('k2a_kernel', XF0, XF1, KVACC)
    gen_k3('k3a_kernel', XF1)
    gen_k4('k4a_kernel', XF1, XF2, False)
    gen_k1('k1b_kernel', XF2, KVACC+0x20000)
    gen_k2('k2b_kernel', XF2, XF3, KVACC+0x20000)
    gen_k3('k3b_kernel', XF3)
    gen_k4('k4b_kernel', XF3, None, True)
    out = []
    hdr = open('cdna_kernels/%s.s.ref' % KNAME[:-7]).read().split('\n')
    for l in hdr:
        if l.startswith('; Override') : break
        out.append(l)
    for (name, grid, block, lds, text, mv, ms, ni) in kernels:
        out.append('; @launch kernel=%s grid=(%d,1,1) block=(%d,1,1) lds=%d' % (name, grid, block, lds))
    out.append('.amdgcn_target "amdgcn-amd-amdhsa--gfx950"')
    out.append('.text')
    for (name, grid, block, lds, text, mv, ms, ni) in kernels:
        out.append('.globl %s' % name)
        out.append('.p2align 8')
        out.append('.type %s,@function' % name)
        out.append('%s:' % name)
        out.append(text)
    out.append('.section .rodata,"a"')
    for (name, grid, block, lds, text, mv, ms, ni) in kernels:
        nv = ((mv + 1 + 7)//8)*8
        out.append('.p2align 6')
        out.append('.amdhsa_kernel %s' % name)
        out.append('  .amdhsa_next_free_vgpr %d' % nv)
        out.append('  .amdhsa_next_free_sgpr %d' % max(ms+1, 16))
        out.append('  .amdhsa_accum_offset %d' % nv)
        out.append('  .amdhsa_group_segment_fixed_size 0')
        out.append('  .amdhsa_kernarg_size 96')
        out.append('  .amdhsa_user_sgpr_count 2')
        out.append('  .amdhsa_user_sgpr_kernarg_segment_ptr 1')
        out.append('  .amdhsa_system_sgpr_workgroup_id_x 1')
        out.append('.end_amdhsa_kernel')
        sys.stderr.write('%s: %d instr, vgpr %d sgpr %d\n' % (name, ni, mv+1, ms+1))
    return '\n'.join(out) + '\n'

if __name__ == '__main__':
    if len(sys.argv) > 2: STAMPS = True
    txt = build()
    open(sys.argv[1], 'w').write(txt)
```

```python
import re

def parse_regs(op):
    op = op.strip()
    neg = op.startswith('-')
    if neg: op = op[1:]
    if op.startswith('abs(') and op.endswith(')'): op = op[4:-1]
    if op.startswith('|') and op.endswith('|'): op = op[1:-1]
    m = re.fullmatch(r'v(\d+)', op)
    if m: return ('v', {int(m.group(1))})
    m = re.fullmatch(r'v\[(\d+):(\d+)\]', op)
    if m: return ('v', set(range(int(m.group(1)), int(m.group(2))+1)))
    m = re.fullmatch(r's(\d+)', op)
    if m: return ('s', {int(m.group(1))})
    m = re.fullmatch(r's\[(\d+):(\d+)\]', op)
    if m: return ('s', set(range(int(m.group(1)), int(m.group(2))+1)))
    if op == 'vcc': return ('s', {106, 107})
    if op == 'exec': return ('s', {126, 127})
    if op == 'm0': return ('s', {124})
    return (None, set())

TRANS = ('v_exp_f32', 'v_log_f32', 'v_rcp_f32', 'v_rsq_f32', 'v_sqrt_f32', 'v_sin_f32', 'v_cos_f32')

class Ins:
    __slots__ = ('kind', 'vw', 'vr', 'sw', 'sr', 'pos', 'passes', 'srcc', 'dst_exact', 'wide')

class Emitter:
    def __init__(self):
        self.lines = []
        self.pos = 0
        self.hist = []
        self.vm = []
        self.lg = []
        self.smem = 0
        self.max_v = -1
        self.max_s = -1
        self.ninstr = 0
        self.vmc = 0

    def raw(self, text):
        self.lines.append(text)
    def comment(self, t):
        self.lines.append('    ; ' + t)
    def label(self, name):
        self.fence()
        self.lines.append(name + ':')
    def nop(self, n):
        while n > 0:
            k = min(n, 16)
            self.lines.append('    s_nop %d' % (k-1))
            self.pos += k
            n -= k
    def fence(self):
        need = 0
        for h in self.hist:
            need = max(need, 20 - (self.pos - h.pos - 1)) if h.kind == 'mfma' else max(need, 5 - (self.pos - h.pos - 1))
        if need > 0: self.nop(need)
        self.hist = []

    def waitcnt(self, vm=None, lg=None):
        parts = []
        if vm is not None:
            vm = min(vm, 63)
            if vm < len(self.vm):
                self.vm = self.vm[len(self.vm)-vm:] if vm > 0 else []
                parts.append('vmcnt(%d)' % vm)
        if lg is not None:
            lg = min(lg, 15)
            if lg < len(self.lg) or self.smem:
                if self.smem:
                    lg = 0
                self.lg = self.lg[len(self.lg)-lg:] if lg > 0 else []
                self.smem = 0
                parts.append('lgkmcnt(%d)' % lg)
        if parts:
            self.lines.append('    s_waitcnt ' + ' '.join(parts))
            self.pos += 1
            self.ninstr += 1
    def save(self):
        return (list(self.vm), list(self.lg), self.vmc)
    def restore(self, st):
        self.vm, self.lg, self.vmc = list(st[0]), list(st[1]), st[2]
    def wait_mark(self, mark):
        self.waitcnt(vm=self.vmc - mark)
    def wait_all(self):
        self.lines.append('    s_waitcnt vmcnt(0) lgkmcnt(0)')
        self.pos += 1
        self.vm = []; self.lg = []; self.smem = 0
    def barrier(self):
        self.I('s_barrier')

    def I(self, op, *ops, mods=''):
        ops = [str(o) for o in ops]
        ins = Ins(); ins.passes = 0; ins.srcc = set(); ins.dst_exact = None; ins.wide = False
        vw, vr, sw, sr = set(), set(), set(), set()
        def add(o, w):
            k, r = parse_regs(o)
            if k == 'v': (vw if w else vr).update(r)
            elif k == 's': (sw if w else sr).update(r)
        kind = None
        is_dpp = 'dpp' in op or 'row_' in mods
        lds_dma = op.startswith('buffer_load') and (' lds' in (' ' + mods))
        if op.startswith('v_mfma'):
            kind = 'mfma'
            add(ops[0], True); add(ops[1], False); add(ops[2], False); add(ops[3], False)
            ins.passes = 8 if '32x32' in op else 4
            ins.srcc = parse_regs(ops[3])[1]
            ins.dst_exact = ops[0]
            ab = parse_regs(ops[1])[1] | parse_regs(ops[2])[1]
        elif op.startswith('v_permlane'):
            kind = 'permlane'
            add(ops[0], True); add(ops[1], True); add(ops[0], False); add(ops[1], False)
        elif op.startswith('v_readfirstlane') or op.startswith('v_readlane'):
            kind = 'readlane'
            add(ops[0], True)
            for o in ops[1:]: add(o, False)
        elif op.startswith('v_'):
            kind = 'trans' if op.split('_e')[0] in TRANS else 'valu'
            add(ops[0], True)
            for o in ops[1:]: add(o, False)
            if op.startswith('v_fmac') or op.startswith('v_fmaak') and False: add(ops[0], False)
            if op.startswith('v_fmac'): add(ops[0], False)
        elif op.startswith('buffer_load'):
            kind = 'vmem'
            if lds_dma:
                for o in ops: add(o, False)
                sr.add(124)
            else:
                add(ops[0], True)
                if 'd16' in op: add(ops[0], False)
                for o in ops[1:]: add(o, False)
        elif op.startswith('buffer_store') or op.startswith('buffer_atomic'):
            kind = 'vmem'
            for o in ops: add(o, False)
            ins.wide = ('x4' in op or 'x3' in op)
        elif op.startswith('ds_read') or op.startswith('ds_bpermute') or op.startswith('ds_swizzle'):
            kind = 'ds'
            add(ops[0], True)
            for o in ops[1:]: add(o, False)
        elif op.startswith('ds_write'):
            kind = 'ds'
            for o in ops: add(o, False)
        elif op.startswith('s_load') or op.startswith('s_mem'):
            kind = 'smem'
            add(ops[0], True)
            for o in ops[1:]: add(o, False)
        elif op.startswith('s_'):
            kind = 'salu'
            if op in ('s_barrier', 's_endpgm', 's_setprio', 's_sleep') or op.startswith('s_cbranch') or op == 's_branch':
                pass
            elif op.startswith('s_cmp'):
                for o in ops: add(o, False)
            else:
                add(ops[0], True)
                for o in ops[1:]: add(o, False)
        else:
            raise ValueError(op)
        ins.kind = kind; ins.vw = vw; ins.vr = vr; ins.sw = sw; ins.sr = sr
        touched = vr | vw
        for i in range(len(self.vm)-1, -1, -1):
            if self.vm[i] & touched:
                self.waitcnt(vm=len(self.vm)-1-i)
                break
        for i in range(len(self.lg)-1, -1, -1):
            if self.lg[i] & touched:
                self.waitcnt(lg=len(self.lg)-1-i)
                break
        if self.smem and ((sr | sw) & self.smem_regs):
            self.waitcnt(lg=0)
        need = 0
        for h in self.hist:
            el = self.pos - h.pos - 1
            req = 0
            if h.kind in ('valu', 'trans', 'permlane'):
                if kind == 'mfma' and (h.vw & vr): req = max(req, 2)
                if is_dpp and (h.vw & vr): req = max(req, 2)
                if kind == 'permlane' and (h.vw & vr): req = max(req, 2)
                if kind == 'readlane' and (h.vw & vr): req = max(req, 1)
                if h.kind == 'trans' and kind in ('valu', 'permlane', 'mfma') and (h.vw & (vr | vw)): req = max(req, 1)
            if h.kind in ('valu', 'trans', 'readlane') and h.sw:
                if kind in ('valu', 'trans', 'mfma') and (h.sw & sr): req = max(req, 2)
                if kind == 'vmem' and (h.sw & sr): req = max(req, 5)
                if kind == 'readlane' and (h.sw & sr): req = max(req, 4)
                if kind in ('salu', 'smem') and (h.sw & sr): req = max(req, 4)
            if h.kind == 'salu' and (124 in h.sw) and lds_dma: req = max(req, 1)
            if h.kind == 'mfma':
                big = 12 if h.passes == 8 else 8
                if kind in ('valu', 'trans', 'permlane', 'readlane', 'vmem', 'ds') and (h.vw & (vr | vw)): req = max(req, big)
                if kind == 'mfma':
                    if h.vw & ab: req = max(req, big)
                    if h.vw & ins.srcc:
                        if ops[3] == h.dst_exact and ins.passes == h.passes: pass
                        else: req = max(req, big - 2)
                    elif h.vw & vw:
                        req = max(req, big - 2)
                if kind in ('valu', 'trans', 'permlane') and (h.srcc & vw): req = max(req, 7 if h.passes == 8 else 3)
            if h.kind == 'vmem' and h.wide and kind in ('valu', 'trans', 'permlane', 'mfma') and (h.vr & vw): req = max(req, 2)
            need = max(need, req - el)
        if need > 0: self.nop(need)
        text = '    ' + op
        if ops: text += ' ' + ', '.join(ops)
        if mods: text += ' ' + mods
        self.lines.append(text)
        ins.pos = self.pos
        self.pos += 1
        self.ninstr += 1
        self.hist.append(ins)
        self.hist = [h for h in self.hist if self.pos - h.pos < 24]
        if vw or vr: self.max_v = max(self.max_v, max(vw | vr))
        ss = {x for x in (sw | sr) if x < 104}
        if ss: self.max_s = max(self.max_s, max(ss))
        if kind == 'vmem':
            self.vmc += 1
            self.vm.append(set() if (lds_dma or not op.startswith('buffer_load')) else set(vw))
        elif kind == 'ds':
            self.lg.append(set(vw))
        elif kind == 'smem':
            if not self.smem: self.smem_regs = set()
            self.smem = 1
            self.smem_regs |= sw
        return ins

    def text(self):
        return '\n'.join(self.lines) + '\n'
```

```python
import sys
from emit import Emitter
from layout import *

KNAME = 'interleave_layers__linear_kernel_hedgehog__dense_activation_gelu__prompt_kernel'
LOG2E = 0x3fb8aa3b
kernels = []

def V(i, n=1):
    return 'v%d' % i if n == 1 else 'v[%d:%d]' % (i, i+n-1)
def Sg(i, n=1):
    return 's%d' % i if n == 1 else 's[%d:%d]' % (i, i+n-1)

def prologue(e, nwg, ptrs):
    e.I('s_cmp_ge_u32', 's2', nwg)
    e.I('s_cbranch_scc1', 'L_end_%s' % e.name)
    if STAMPS: e.I('s_memrealtime', 's[90:91]')
    e.I('s_load_dwordx2', 's[4:5]', 's[0:1]', 88)
    tmp = 28
    for (off, srd, nb) in ptrs:
        e.I('s_load_dwordx2', Sg(srd, 2), 's[0:1]', off)
    e.I('v_and_b32', 'v1', 63, 'v0')
    e.I('v_lshrrev_b32', 'v2', 6, 'v0')
    e.I('v_readfirstlane_b32', 's20', 'v2')
    e.I('v_and_b32', 'v3', 15, 'v1')
    e.I('v_lshrrev_b32', 'v4', 4, 'v1')
    e.I('v_lshlrev_b32', 'v5', 4, 'v1')
    e.waitcnt(lg=0)
    e.I('s_mov_b32', 's8', 's4')
    e.I('s_and_b32', 's9', 's5', 0xffff)
    e.I('s_mov_b32', 's10', WS_BYTES)
    e.I('s_mov_b32', 's11', 0x20000)
    for (off, srd, nb) in ptrs:
        e.I('s_and_b32', Sg(srd+1), Sg(srd+1), 0xffff)
        e.I('s_mov_b32', Sg(srd+2), nb)
        e.I('s_mov_b32', Sg(srd+3), 0x20000)

STAMPS = False
KIDX = {'prep_kernel': 0, 'k1a_kernel': 1, 'k2a_kernel': 2, 'k3a_kernel': 3, 'k4a_kernel': 4, 'k1b_kernel': 5, 'k2b_kernel': 6, 'k3b_kernel': 7, 'k4b_kernel': 8}
STMOD = ' sc1'
def stamp(e, idx):
    if not STAMPS: return
    e.I('s_memtime', Sg(60+2*idx, 2))
    e.waitcnt(lg=0)
def dump_stamps(e, n):
    if not STAMPS: return
    e.I('s_lshl_b32', 's26', 's2', 3); e.I('s_add_u32', 's26', 's26', 's20')
    e.I('s_lshl_b32', 's26', 's26', 6); e.I('s_add_u32', 's26', 's26', 0x2000000 + KIDX[e.name]*0x40000)
    e.I('v_mov_b32', 'v6', 0)
    for i in range(n):
        e.I('v_mov_b32', 'v7', Sg(60+2*i))
        e.I('buffer_store_dword', 'v7', 'v6', 's[8:11]', 's26', mods='offen offset:%d' % (4*i))
    e.I('s_memrealtime', 's[92:93]')
    e.I('v_mov_b32', 'v7', 's90'); e.I('buffer_store_dword', 'v7', 'v6', 's[8:11]', 's26', mods='offen offset:56')
    e.I('v_mov_b32', 'v7', 's92'); e.I('buffer_store_dword', 'v7', 'v6', 's[8:11]', 's26', mods='offen offset:60')

def finish(e, name, grid, block, lds):
    e.label('L_end_%s' % name)
    e.raw('    s_endpgm')
    kernels.append((name, grid, block, lds, e.text(), e.max_v, e.max_s, e.ninstr))

def xreduce(e, op, v, tmp):
    e.I('v_mov_b32', tmp, v); e.I('v_permlane16_swap_b32', v, tmp); e.I(op, v, v, tmp)
    e.I('v_mov_b32', tmp, v); e.I('v_permlane32_swap_b32', v, tmp); e.I(op, v, v, tmp)

def rowreduce(e, op, regs):
    for sh in (8, 4, 2, 1):
        for r in regs:
            e.I(op + '_dpp', r, r, r, mods='row_ror:%d row_mask:0xf bank_mask:0xf' % sh)

def bf16_roundtrip(e, regs, tmpbase):
    for i in range(0, len(regs), 2):
        t = V(tmpbase + i//2)
        e.I('v_cvt_pk_bf16_f32', t, regs[i], regs[i+1])
    for i in range(0, len(regs), 2):
        t = V(tmpbase + i//2)
        e.I('v_lshlrev_b32', regs[i], 16, t)
        e.I('v_and_b32', regs[i+1], 0xffff0000, t)

def ln_stats(e, aS1, aS2, vmean_n, vrstd, t0, t1, masks):
    sD1, sD2, sD3, sDg = masks
    e.I('v_cndmask_b32', t0, V(aS2), V(aS2+1), sD1)
    e.I('v_cndmask_b32', t0, t0, V(aS2+2), sD2)
    e.I('v_cndmask_b32', t0, t0, V(aS2+3), sD3)
    e.I('v_cndmask_b32', t0, 0, t0, sDg)
    xreduce(e, 'v_add_f32', t0, t1)
    inv = 0x3b124925
    e.I('v_mul_f32', t1, inv, V(aS1))
    e.I('v_mul_f32', t0, inv, t0)
    e.I('v_fma_f32', t0, '-' + t1, t1, t0)
    e.I('v_max_f32', t0, 0, t0)
    e.I('v_add_f32', t0, 0x3727c5ac, t0)
    e.I('v_rsq_f32', vrstd, t0)
    e.I('v_mul_f32', vmean_n, t1, vrstd)
    e.I('v_sub_f32', vmean_n, 0, vmean_n)

def diag_masks(e, base):
    e.I('v_and_b32', 'v12', 3, 'v3')
    e.I('v_lshrrev_b32', 'v13', 2, 'v3')
    e.I('v_cmp_eq_u32', Sg(base, 2), 1, 'v12')
    e.I('v_cmp_eq_u32', Sg(base+2, 2), 2, 'v12')
    e.I('v_cmp_eq_u32', Sg(base+4, 2), 3, 'v12')
    e.I('v_cmp_eq_u32', Sg(base+6, 2), 'v4', 'v13')
    return [Sg(base+2*i, 2) for i in range(4)]

def prep_section(e, name, kinds, first_wg):
    e.label('L_prep_%s' % name)
    srcs = {'wqkv': (8, 16, D*3*D*2), 'wphi': (16, 24, H*DH*DH*2), 'w1': (40, 32, D*F*2), 'w2': (56, 36, F*D*2)}
    for k in kinds:
        off, srd, nb = srcs[k]
        e.I('s_load_dwordx2', Sg(srd, 2), 's[0:1]', off)
    e.waitcnt(lg=0)
    for k in kinds:
        off, srd, nb = srcs[k]
        e.I('s_and_b32', Sg(srd+1), Sg(srd+1), 0xffff)
        e.I('s_mov_b32', Sg(srd+2), nb); e.I('s_mov_b32', Sg(srd+3), 0x20000)
    e.I('s_sub_u32', 's21', 's2', first_wg); e.I('s_lshl_b32', 's21', 's21', 3); e.I('s_add_u32', 's21', 's21', 's20')
    OOB = 0x40000000
    def pack(srd, stride, nks, ksrow, outbase, s_idx, colsum_base, s_out=None, ksmul=1024):
        R = 16; R2 = 96
        for ks in range(nks):
            for j in range(8):
                e.I('s_add_u32', 's23', 's22', (ksrow*ks + (j & 3))*stride)
                e.I('buffer_load_ushort', V(R2 + ks*8 + j), 'v8' if j < 4 else 'v9', Sg(srd, 4), 's23', mods='offen')
        for ks in range(nks):
            for q in range(4):
                e.I('v_lshl_or_b32', V(R + ks*4 + q), V(R2 + ks*8 + 2*q + 1), 16, V(R2 + ks*8 + 2*q))
        if s_out is None:
            e.I('s_mul_i32', 's23', s_idx, nks*1024)
            e.I('s_add_u32', 's23', 's23', outbase)
        else:
            e.I('s_add_u32', 's23', s_out, outbase)
        if colsum_base is not None:
            e.I('v_mov_b32', 'v10', 0)
        for ks in range(nks):
            if ks: e.I('s_add_u32', 's23', 's23', ksmul)
            e.I('buffer_store_dwordx4', V(R+ks*4, 4), 'v5', 's[8:11]', 's23', mods='offen')
            if colsum_base is not None:
                for q in range(4):
                    e.I('v_lshlrev_b32', 'v11', 16, V(R+ks*4+q))
                    e.I('v_and_b32', 'v12', 0xffff0000, V(R+ks*4+q))
                    e.I('v_add_f32', 'v10', 'v10', 'v11')
                    e.I('v_add_f32', 'v10', 'v10', 'v12')
        if colsum_base is not None:
            xreduce(e, 'v_add_f32', 'v10', 'v11')
            e.I('v_lshlrev_b32', 'v11', 2, 'v3')
            e.I('s_lshl_b32', 's23', s_idx, 6)
            e.I('s_add_u32', 's23', 's23', colsum_base)
            e.I('buffer_store_dword', 'v10', 'v11', 's[8:11]', 's23', mods='offen')
        e.I('s_branch', 'L_end_%s' % name)
    if 'w1' in kinds:
        e.I('s_cmp_lt_u32', 's21', 112); e.I('s_cbranch_scc1', 'L_p_w1_%s' % name)
        e.I('s_cmp_lt_u32', 's21', 224); e.I('s_cbranch_scc1', 'L_p_w2_%s' % name)
        e.I('s_branch', 'L_end_%s' % name)
        e.label('L_p_w1_%s' % name)
        e.I('s_mov_b32', 's40', 's21')
        e.I('s_lshl_b32', 's22', 's40', 5)
        e.I('s_mov_b32', 's46', 4*3584)
        e.I('v_mul_lo_u32', 'v8', 's46', 'v4')
        e.I('v_lshl_add_u32', 'v8', 'v3', 1, 'v8')
        e.I('v_add_u32', 'v9', 16*3584, 'v8')
        e.I('s_lshr_b32', 's47', 's40', 3); e.I('s_mul_i32', 's47', 's47', 14*8192)
        e.I('s_and_b32', 's46', 's40', 7); e.I('s_lshl_b32', 's46', 's46', 10); e.I('s_add_u32', 's47', 's47', 's46')
        pack(32, 3584, 14, 32, W1_P, 's40', CS1, 's47', 8192)
        e.label('L_p_w2_%s' % name)
        e.I('s_sub_u32', 's40', 's21', 112)
        e.I('s_lshr_b32', 's41', 's40', 2)
        e.I('s_and_b32', 's42', 's40', 3)
        e.I('s_lshl_b32', 's22', 's41', 5)
        e.I('s_mul_i32', 's43', 's42', 448*896)
        e.I('s_add_u32', 's22', 's22', 's43')
        e.I('s_mov_b32', 's46', 4*896)
        e.I('v_mul_lo_u32', 'v8', 's46', 'v4')
        e.I('v_lshl_add_u32', 'v8', 'v3', 1, 'v8')
        e.I('v_add_u32', 'v9', 16*896, 'v8')
        pack(36, 896, 14, 32, W2_P, 's40', None)
    else:
        e.I('s_cmp_lt_u32', 's21', 96); e.I('s_cbranch_scc1', 'L_p_wqkv_%s' % name)
        e.I('s_cmp_lt_u32', 's21', 98); e.I('s_cbranch_scc1', 'L_p_wphi_%s' % name)
        e.I('s_branch', 'L_end_%s' % name)
        e.label('L_p_wqkv_%s' % name)
        e.I('s_mul_i32', 's40', 's21', 43); e.I('s_lshr_b32', 's40', 's40', 8)
        e.I('s_mul_i32', 's41', 's40', 6); e.I('s_sub_u32', 's41', 's21', 's41')
        e.I('s_lshr_b32', 's42', 's41', 1)
        e.I('s_and_b32', 's43', 's41', 1)
        e.I('s_mul_i32', 's44', 's42', 448); e.I('s_mul_i32', 's45', 's40', 28)
        e.I('s_add_u32', 's44', 's44', 's45'); e.I('s_lshl_b32', 's45', 's43', 4)
        e.I('s_add_u32', 's44', 's44', 's45')
        e.I('s_lshl_b32', 's22', 's44', 1)
        e.I('v_add_u32', 'v6', 's45', 'v3')
        e.I('v_cmp_gt_u32', 'vcc', 28, 'v6')
        e.I('s_mov_b32', 's46', 4*2688)
        e.I('v_mul_lo_u32', 'v8', 's46', 'v4')
        e.I('v_lshl_add_u32', 'v8', 'v3', 1, 'v8')
        e.I('v_mov_b32', 'v7', OOB)
        e.I('v_cndmask_b32', 'v8', 'v7', 'v8', 'vcc')
        e.I('v_add_u32', 'v9', 16*2688, 'v8')
        e.I('s_mul_i32', 's47', 's40', 86016); e.I('s_lshl_b32', 's46', 's41', 10); e.I('s_add_u32', 's47', 's47', 's46')
        pack(16, 2688, 14, 32, WQKV_P, 's21', CSQKV, 's47', 6144)
        e.label('L_p_wphi_%s' % name)
        e.I('s_sub_u32', 's40', 's21', 96)
        e.I('s_mul_i32', 's22', 's40', 8*1568)
        e.I('v_mul_u32_u24', 'v8', 4*56, 'v4')
        e.I('v_lshl_add_u32', 'v8', 'v3', 1, 'v8')
        e.I('v_mov_b32', 'v7', OOB)
        e.I('v_add_u32', 'v9', 16*56, 'v8')
        e.I('v_cmp_gt_u32', 'vcc', 3, 'v4')
        e.I('v_cndmask_b32', 'v9', 'v7', 'v9', 'vcc')
        e.I('v_add_u32', 'v10', 32, 'v8')
        e.I('v_add_u32', 'v11', 32, 'v9')
        e.I('v_cmp_gt_u32', 'vcc', 12, 'v3')
        e.I('v_cndmask_b32', 'v10', 'v7', 'v10', 'vcc')
        e.I('v_cndmask_b32', 'v11', 'v7', 'v11', 'vcc')
        for hh in range(8):
            for ft in range(2):
                for j in range(8):
                    e.I('s_add_u32', 's23', 's22', hh*1568 + (j & 3)*56)
                    voff = ['v8', 'v9', 'v10', 'v11'][ft*2 + (j >> 2)]
                    e.I('buffer_load_ushort', V(96 + (hh*2+ft)*8 + j), voff, 's[24:27]', 's23', mods='offen')
        for fr in range(16):
            for q in range(4):
                e.I('v_lshl_or_b32', V(16 + fr*4 + q), V(96 + fr*8 + 2*q + 1), 16, V(96 + fr*8 + 2*q))
        e.I('s_lshl_b32', 's23', 's40', 14)
        e.I('s_add_u32', 's23', 's23', WPHI_P)
        for fr in range(16):
            if fr % 4 == 0 and fr: e.I('s_add_u32', 's23', 's23', 4096)
            e.I('buffer_store_dwordx4', V(16+fr*4, 4), 'v5', 's[8:11]', 's23', mods='offen offset:%d' % ((fr % 4)*1024))

def gen_k1(name, XIN, KV, first):
    e = Emitter(); e.name = name
    ptrs = [(80, 16, 256)]
    if first: ptrs += [(8, 12, D*3*D*2), (16, 32, H*DH*DH*2), (0, 36, S*D*2), (24, 96, D*D*2)]
    prologue(e, 256, ptrs)
    stamp(e, 0)
    e.I('s_and_b32', 's26', 's2', 7); e.I('s_lshr_b32', 's27', 's2', 3)
    e.I('s_lshr_b32', 's21', 's26', 1); e.I('s_lshl_b32', 's21', 's21', 2); e.I('s_lshr_b32', 's28', 's27', 3); e.I('s_add_u32', 's21', 's21', 's28')
    e.I('s_and_b32', 's22', 's26', 1); e.I('s_lshl_b32', 's22', 's22', 3); e.I('s_and_b32', 's28', 's27', 7); e.I('s_add_u32', 's22', 's22', 's28')
    e.I('s_lshl_b32', 's23', 's21', 3)
    e.I('s_add_u32', 's23', 's23', 's20')
    if first:
        XR = 16
        OOB = 0x40000000
        e.I('s_mul_i32', 's26', 's23', 14336)
        e.I('v_mul_u32_u24', 'v9', 147, 'v1'); e.I('v_lshrrev_b32', 'v9', 11, 'v9')
        e.I('v_mul_u32_u24', 'v10', 14, 'v9'); e.I('v_sub_u32', 'v10', 'v1', 'v10')
        e.I('v_mul_u32_u24', 'v6', 2688, 'v9')
        e.I('v_lshrrev_b32', 'v9', 2, 'v10'); e.I('v_mul_u32_u24', 'v9', 896, 'v9'); e.I('v_add_u32', 'v6', 'v6', 'v9')
        e.I('v_and_b32', 'v9', 3, 'v10'); e.I('v_lshl_add_u32', 'v6', 'v9', 4, 'v6')
        e.I('v_cmp_gt_u32', 'vcc', 12, 'v10')
        e.I('v_mov_b32', 'v9', OOB)
        e.I('v_cndmask_b32', 'v6', 'v9', 'v6', 'vcc')
        e.I('s_mul_i32', 's24', 's20', 4*2688); e.I('s_mul_i32', 's27', 's22', 56); e.I('s_add_u32', 's24', 's24', 's27')
        e.I('s_mul_i32', 's25', 's20', 4*224)
        e.I('s_mov_b32', 's58', -1); e.I('s_mov_b32', 's59', 0x00ffffff)
        e.I('v_mul_u32_u24', 'v7', 896, 'v3'); e.I('v_lshl_add_u32', 'v7', 'v4', 4, 'v7')
        def dma(ks):
            e.I('s_add_u32', 's28', 's25', ks*7168)
            e.I('s_mov_b32', 'm0', 's28')
            e.I('s_add_u32', 's27', 's24', ks*32*2688)
            e.I('s_mov_b64', 'exec', 's[58:59]')
            e.I('buffer_load_dwordx4', 'v6', 's[12:15]', 's27', mods='offen lds')
            e.I('s_mov_b64', 'exec', -1)
        def xl(ks):
            e.I('buffer_load_dwordx4', V(XR+ks*4, 4), 'v7', 's[36:39]', 's26', mods='offen offset:%d' % (ks*64))
        groups = [(2*i, 2*i+2) for i in range(7)]
        PRE = 3
        marks = {}
        def group_ops(gi):
            ops = []
            for ks in range(*groups[gi]):
                ops += [lambda ks=ks: dma(ks), lambda ks=ks: xl(ks)]
            return ops
        e.I('v_mov_b32', 'v15', 0)
        e.I('s_lshl_b32', 's31', 's22', 2)
        e.I('s_or_b32', 's56', 's20', 's21')
        e.I('s_cmp_lg_u32', 's56', 0); e.I('s_cbranch_scc1', 'L_noclaim_%s' % name)
        for i in range(4): e.I('v_mov_b32', V(120+i), 0)
        e.I('s_lshl_b32', 's27', 's22', 13); e.I('s_add_u32', 's27', 's27', KV)
        for i in range(8):
            if i == 4: e.I('s_add_u32', 's27', 's27', 4096)
            e.I('buffer_store_dwordx4', V(120, 4), 'v5', 's[8:11]', 's27', mods='offen offset:%d sc1' % ((i % 4)*1024))
        e.label('L_noclaim_%s' % name)
        e.vm = []; e.vmc = 0
        for gi in range(PRE):
            for op in group_ops(gi): op()
            marks[gi] = e.vmc
        CSR = 156; CSV = 172; WPH = 216; WG_ = 224
        e.I('v_mul_u32_u24', 'v240', 4*56, 'v4'); e.I('v_lshl_add_u32', 'v240', 'v3', 1, 'v240')
        e.I('v_add_u32', 'v241', 16*56, 'v240')
        e.I('v_cmp_gt_u32', 'vcc', 3, 'v4'); e.I('v_cndmask_b32', 'v241', 'v9', 'v241', 'vcc')
        e.I('v_add_u32', 'v242', 32, 'v240'); e.I('v_add_u32', 'v243', 32, 'v241')
        e.I('v_cmp_gt_u32', 'vcc', 12, 'v3'); e.I('v_cndmask_b32', 'v242', 'v9', 'v242', 'vcc'); e.I('v_cndmask_b32', 'v243', 'v9', 'v243', 'vcc')
        e.I('s_mul_i32', 's30', 's22', 1568)
        def small_ops(part):
            ops = []
            for q in range(4):
                def a(q=q):
                    for jj in range(2):
                        j = 2*q + jj
                        e.I('s_add_u32', 's29', 's30', (j & 3)*56)
                        e.I('buffer_load_ushort', V(WG_+8*part+j), V(240+2*part+(j >> 2)), 's[32:35]', 's29', mods='offen')
                ops.append(a)
            return ops
        if True:
            st0 = e.save()
            e.I('s_cmp_ge_u32', 's2', 224); e.I('s_cbranch_scc1', 'L_nowo_%s' % name)
            e.I('s_cmp_ge_u32', 's20', 2); e.I('s_cbranch_scc1', 'L_nowo_%s' % name)
            e.I('s_lshl_b32', 's27', 's2', 1); e.I('s_add_u32', 's27', 's27', 's20')
            e.I('s_lshr_b32', 's28', 's27', 4); e.I('s_and_b32', 's29', 's27', 15)
            e.I('s_lshl_b32', 's28', 's28', 5); e.I('s_mul_i32', 's29', 's29', 28*896); e.I('s_add_u32', 's28', 's28', 's29')
            e.I('v_mul_u32_u24', 'v244', 4*896, 'v4'); e.I('v_lshl_add_u32', 'v244', 'v3', 1, 'v244')
            e.I('v_add_u32', 'v245', 16*896, 'v244')
            e.I('v_cmp_gt_u32', 'vcc', 3, 'v4'); e.I('v_cndmask_b32', 'v245', 'v9', 'v245', 'vcc')
            for j in range(8):
                e.I('s_add_u32', 's29', 's28', (j & 3)*896)
                e.I('buffer_load_ushort', V(246+j), 'v244' if j < 4 else 'v245', 's[96:99]', 's29', mods='offen')
            for q in range(4):
                e.I('v_lshl_or_b32', V(180+q), V(246+2*q+1), 16, V(246+2*q))
            e.I('s_lshl_b32', 's27', 's27', 10); e.I('s_add_u32', 's27', 's27', WO_P)
            e.I('buffer_store_dwordx4', V(180, 4), 'v5', 's[8:11]', 's27', mods='offen')
            e.label('L_nowo_%s' % name)
            e.restore(st0)
        ONES = 152
        for i in range(4): e.I('v_mov_b32', V(ONES+i), 0x3f803f80)
        masks = diag_masks(e, 40)
        e.I('v_cmp_eq_u32', 's[48:49]', 3, 'v4')
        e.I('v_cmp_eq_u32', 's[50:51]', 12, 'v3')
        e.I('v_cmp_le_u32', 's[52:53]', 12, 'v3')
        e.I('v_and_b32', 'v10', 1, 'v4')
        e.I('v_cmp_eq_u32', 's[94:95]', 1, 'v10')
        e.I('v_lshl_add_u32', 'v8', 'v4', 3, 'v13')
        e.I('v_lshl_add_u32', 'v254', 'v10', 2, 'v8')
        e.I('v_xor_b32', 'v10', 1, 'v10'); e.I('v_lshl_add_u32', 'v255', 'v10', 2, 'v8')
        e.I('v_mul_u32_u24', 'v8', 224, 'v254'); e.I('v_lshl_add_u32', 'v8', 'v12', 3, 'v8')
        e.I('v_mul_u32_u24', 'v11', 224, 'v255'); e.I('v_lshl_add_u32', 'v11', 'v12', 3, 'v11')
        e.I('v_add_u32', 'v254', 8*7168, 'v8'); e.I('v_add_u32', 'v255', 8*7168, 'v11')
        stamp(e, 1)
        BR = 72; ACC = 120
        def bread(ks):
            buf = BR + (ks & 1)*24
            b1, b2, k2 = ('v8', 'v11', ks) if ks < 8 else ('v254', 'v255', ks-8)
            for t in range(6):
                off = k2*7168 + (t >> 1)*64 + (t & 1)*32
                e.I('ds_read_b64_tr_b16', V(buf+4*t, 2), b1, mods='offset:%d' % off)
                e.I('ds_read_b64_tr_b16', V(buf+4*t+2, 2), b2, mods='offset:%d' % off)
        for gi, (k0, k1) in enumerate(groups):
            e.wait_mark(marks[gi])
            e.barrier()
            if gi == 0:
                stamp(e, 2)
                st_ = e.save()
                e.I('s_cmp_lg_u32', 's56', 0); e.I('s_cbranch_scc1', 'L_nozero_%s' % name)
                e.I('s_mov_b64', 'exec', 1)
                e.I('v_mov_b32', 'v14', 1)
                e.I('buffer_store_dword', 'v14', 'v15', 's[16:19]', 's31', mods='offen offset:64 sc1')
                e.I('s_mov_b64', 'exec', -1)
                e.label('L_nozero_%s' % name)
                e.restore(st_)
            if gi+PRE < len(groups): pend = group_ops(gi+PRE)
            elif gi+PRE-len(groups) < 2: pend = small_ops(gi+PRE-len(groups))
            else: pend = []
            bread(k0)
            for ks in range(k0, k1):
                if ks+1 < k1: bread(ks+1)
                buf = BR + (ks & 1)*24
                x = V(XR+ks*4, 4)
                xa = XR+ks*4
                e.I('v_mov_b32', 'v9', V(xa)); e.I('v_mov_b32', 'v10', V(xa+1))
                e.I('v_cndmask_b32', V(xa), V(xa), V(xa+2), 's[94:95]'); e.I('v_cndmask_b32', V(xa+1), V(xa+1), V(xa+3), 's[94:95]')
                e.I('v_cndmask_b32', V(xa+2), V(xa+2), 'v9', 's[94:95]'); e.I('v_cndmask_b32', V(xa+3), V(xa+3), 'v10', 's[94:95]')
                def C(i): return V(ACC+4*i, 4) if ks else '0'
                def CC(i): return V(CSR+4*i, 4) if ks else '0'
                e.I('v_mfma_f32_16x16x32_bf16', V(ACC+24, 4), V(ONES, 4), x, C(6))
                e.I('v_mfma_f32_16x16x32_bf16', V(ACC+28, 4), x, x, C(7))
                if pend: pend.pop(0)()
                for t in range(4):
                    e.I('v_mfma_f32_16x16x32_bf16', V(ACC+4*t, 4), V(buf+4*t, 4), x, C(t))
                    e.I('v_mfma_f32_16x16x32_bf16', V(CSR+4*t, 4), V(buf+4*t, 4), V(ONES, 4), CC(t))
                    if t == 1 and pend: pend.pop(0)()
                for t in range(4, 6):
                    e.I('v_mfma_f32_16x16x32_bf16', V(ACC+4*t, 4), x, V(buf+4*t, 4), C(t))
                    e.I('v_mfma_f32_16x16x32_bf16', V(CSR+4*t, 4), V(ONES, 4), V(buf+4*t, 4), CC(t))
            while pend: pend.pop(0)()
            if gi+PRE < len(groups): marks[gi+PRE] = e.vmc
        for ft in range(2):
            for q in range(4):
                e.I('v_lshl_or_b32', V(WPH+4*ft+q), V(WG_+8*ft+2*q+1), 16, V(WG_+8*ft+2*q))
    else:
        XR = 16
        e.I('s_mul_i32', 's26', 's23', 14336)
        e.I('s_add_u32', 's26', 's26', XIN)
        e.I('s_mul_i32', 's24', 's22', 86016)
        e.I('s_lshl_b32', 's25', 's20', 10)
        e.I('s_add_u32', 's24', 's24', 's25')
        e.I('s_add_u32', 's24', 's24', WQKV_P)
        def dma(j):
            e.I('s_add_u32', 's28', 's25', j*8192)
            e.I('s_mov_b32', 'm0', 's28')
            if j == 10:
                e.I('s_min_u32', 's27', 's20', 3); e.I('s_lshl_b32', 's27', 's27', 10)
                e.I('s_sub_u32', 's27', 's27', 's25'); e.I('s_add_u32', 's27', 's27', 's24'); e.I('s_add_u32', 's27', 's27', j*8192)
            else:
                e.I('s_add_u32', 's27', 's24', j*8192)
            e.I('buffer_load_dwordx4', 'v5', 's[8:11]', 's27', mods='offen lds')
        marks = {}
        def group_ops(grp):
            ops = []
            for j in range(3*grp, min(3*grp+3, 11)):
                ops.append(lambda j=j: dma(j))
            for ks in range(4*grp, min(4*grp+4, 14)):
                def xl(ks=ks):
                    e.I('s_add_u32', 's29', 's26', (ks//4)*4096)
                    e.I('buffer_load_dwordx4', V(XR+ks*4, 4), 'v5', 's[8:11]', 's29', mods='offen offset:%d' % ((ks % 4)*1024))
                ops.append(xl)
            return ops
        e.I('v_mov_b32', 'v15', 0)
        e.I('s_lshl_b32', 's31', 's22', 2)
        e.I('s_or_b32', 's56', 's20', 's21')
        e.I('s_cmp_lg_u32', 's56', 0); e.I('s_cbranch_scc1', 'L_noclaim_%s' % name)
        for i in range(4): e.I('v_mov_b32', V(120+i), 0)
        e.I('s_lshl_b32', 's27', 's22', 13); e.I('s_add_u32', 's27', 's27', KV)
        for i in range(8):
            if i == 4: e.I('s_add_u32', 's27', 's27', 4096)
            e.I('buffer_store_dwordx4', V(120, 4), 'v5', 's[8:11]', 's27', mods='offen offset:%d sc1' % ((i % 4)*1024))
        e.label('L_noclaim_%s' % name)
        e.vm = []; e.vmc = 0
        for grp in range(2):
            for op in group_ops(grp): op()
            marks[grp] = e.vmc
        CSR = 156; CSV = 172; WPH = 216
        def small_ops():
            ops = []
            def a0():
                e.I('s_mul_i32', 's30', 's22', 384); e.I('s_add_u32', 's30', 's30', CSQKV)
                for t in range(4):
                    e.I('buffer_load_dwordx4', V(CSR+4*t, 4), 'v6', 's[8:11]', 's30', mods='offen offset:%d' % (t*64))
            def a1():
                for t in range(2):
                    e.I('buffer_load_dword', V(CSV+4*t), 'v7', 's[8:11]', 's30', mods='offen offset:%d' % (256+t*64))
                e.I('s_lshl_b32', 's30', 's22', 11); e.I('s_add_u32', 's30', 's30', WPHI_P)
                for ft in range(2):
                    e.I('buffer_load_dwordx4', V(WPH+4*ft, 4), 'v5', 's[8:11]', 's30', mods='offen offset:%d' % (ft*1024))
            return [a0, a1]
        e.I('v_lshlrev_b32', 'v6', 4, 'v4')
        e.I('v_lshlrev_b32', 'v7', 2, 'v3')
        ONES = 152
        for i in range(4): e.I('v_mov_b32', V(ONES+i), 0x3f803f80)
        masks = diag_masks(e, 40)
        e.I('v_cmp_eq_u32', 's[48:49]', 3, 'v4')
        e.I('v_cmp_eq_u32', 's[50:51]', 12, 'v3')
        e.I('v_cmp_le_u32', 's[52:53]', 12, 'v3')
        e.I('v_add_u32', 'v8', 0x10000, 'v5')
        stamp(e, 1)
        BR = 72; ACC = 120
        def bread(ks):
            buf = BR + (ks & 1)*24
            for t in range(6):
                off = (ks*6+t)*1024
                if off < 65536: e.I('ds_read_b128', V(buf+4*t, 4), 'v5', mods='offset:%d' % off)
                else: e.I('ds_read_b128', V(buf+4*t, 4), 'v8', mods='offset:%d' % (off-65536))
        for grp in range(4):
            e.wait_mark(marks[grp])
            e.barrier()
            if grp == 0:
                stamp(e, 2)
                st_ = e.save()
                e.I('s_cmp_lg_u32', 's56', 0); e.I('s_cbranch_scc1', 'L_nozero_%s' % name)
                e.I('s_mov_b64', 's[54:55]', 'exec')
                e.I('s_mov_b64', 'exec', 1)
                e.I('v_mov_b32', 'v14', 1)
                e.I('buffer_store_dword', 'v14', 'v15', 's[16:19]', 's31', mods='offen offset:64 sc1')
                e.I('s_mov_b64', 'exec', 's[54:55]')
                e.label('L_nozero_%s' % name)
                e.restore(st_)
            kss = list(range(4*grp, min(4*grp+4, 14)))
            pend = group_ops(grp+2) if grp+2 < 4 else (small_ops() if grp == 2 else [])
            bread(kss[0])
            for ks in kss:
                if ks+1 <= kss[-1]: bread(ks+1)
                buf = BR + (ks & 1)*24
                x = V(XR+ks*4, 4)
                def C(i): return V(ACC+4*i, 4) if ks else '0'
                e.I('v_mfma_f32_16x16x32_bf16', V(ACC+24, 4), V(ONES, 4), x, C(6))
                e.I('v_mfma_f32_16x16x32_bf16', V(ACC+28, 4), x, x, C(7))
                if pend: pend.pop(0)()
                for t in range(4):
                    e.I('v_mfma_f32_16x16x32_bf16', V(ACC+4*t, 4), V(buf+4*t, 4), x, C(t))
                    if t == 1 and pend: pend.pop(0)()
                for t in range(4, 6):
                    e.I('v_mfma_f32_16x16x32_bf16', V(ACC+4*t, 4), x, V(buf+4*t, 4), C(t))
            while pend: pend.pop(0)()
            if grp+2 < 4: marks[grp+2] = e.vmc
    CSR = 156; CSV = 172; WPH = 216; BR = 72; ACC = 120
    T = 184
    stamp(e, 3)
    e.I('buffer_load_dword', 'v14', 'v15', 's[16:19]', 's31', mods='offen offset:64 sc1')
    vNM, vRS = V(T), V(T+1)
    ln_stats(e, ACC+24, ACC+28, vNM, vRS, V(T+2), V(T+3), masks)
    STAT = 0x18800
    e.I('s_lshl_b32', 's26', 's20', 7)
    e.I('s_add_u32', 's26', 's26', STAT)
    e.I('v_lshl_add_u32', 'v9', 'v3', 3, 's26')
    e.I('v_lshl_add_u32', 'v10', 'v4', 5, 's26')
    e.I('ds_write_b64', 'v9', V(T, 2))
    e.waitcnt(lg=0)
    e.I('ds_read_b128', V(T+4, 4), 'v10')
    e.I('ds_read_b128', V(T+8, 4), 'v10', mods='offset:16')
    QF = T+12; KF = T+16; TT = T+20
    for (t0, FR) in ((0, QF), (2, KF)):
        for t in range(2):
            for r in range(4):
                e.I('v_mul_f32', V(TT+4*t+r), vNM, V(CSR+4*(t0+t)+r))
            for r in range(4):
                e.I('v_fmac_f32', V(TT+4*t+r), V(ACC+4*(t0+t)+r), vRS)
            e.I('v_cvt_pk_bf16_f32', V(FR+2*t), V(TT+4*t), V(TT+4*t+1))
            e.I('v_cvt_pk_bf16_f32', V(FR+2*t+1), V(TT+4*t+2), V(TT+4*t+3))
    PQ = ACC; PK = ACC+8
    e.I('v_mfma_f32_16x16x32_bf16', V(PK, 4), V(KF, 4), V(WPH, 4), '0')
    e.I('v_mfma_f32_16x16x32_bf16', V(PK+4, 4), V(KF, 4), V(WPH+4, 4), '0')
    e.I('v_mfma_f32_16x16x32_bf16', V(PQ, 4), V(WPH, 4), V(QF, 4), '0')
    e.I('v_mfma_f32_16x16x32_bf16', V(PQ+4, 4), V(WPH+4, 4), V(QF, 4), '0')
    VF = T+28
    for t in range(2):
        for r in range(4):
            nm = V(T+4+2*r); rs = V(T+5+2*r)
            e.I('v_mul_f32', V(TT+4*t+r), nm, V(CSV+4*t))
            e.I('v_fmac_f32', V(TT+4*t+r), V(ACC+16+4*t+r), rs)
            if t == 1:
                e.I('v_cndmask_b32', V(TT+4+r), V(TT+4+r), 1.0, 's[50:51]')
        e.I('v_cvt_pk_bf16_f32', V(VF+2*t), V(TT+4*t), V(TT+4*t+1))
        e.I('v_cvt_pk_bf16_f32', V(VF+2*t+1), V(TT+4*t+2), V(TT+4*t+3))
    A = T+32
    e.I('v_mov_b32', V(A+8), 0xff7fffff); e.I('v_mov_b32', V(A+9), 0x7f7fffff)
    EP = [V(A+16+i) for i in range(8)]; EN = [V(A+24+i) for i in range(8)]
    e.I('s_mov_b32', 's26', LOG2E)
    Kp = [V(PK+i) for i in range(8)]
    bf16_roundtrip(e, Kp, A+32)
    KM = [V(A+i) for i in range(4)]; KN = [V(A+4+i) for i in range(4)]
    MX = [V(A+32+i) for i in range(4)]; MN = [V(A+36+i) for i in range(4)]
    for r in range(4):
        e.I('v_cndmask_b32', KM[r], Kp[4+r], V(A+8), 's[52:53]')
        e.I('v_cndmask_b32', KN[r], Kp[4+r], V(A+9), 's[52:53]')
    for r in range(4):
        e.I('v_max_f32', MX[r], Kp[r], KM[r]); e.I('v_min_f32', MN[r], Kp[r], KN[r])
    for sh in (8, 4, 2, 1):
        for r in range(4):
            e.I('v_max_f32_dpp', MX[r], MX[r], MX[r], mods='row_ror:%d row_mask:0xf bank_mask:0xf' % sh)
            e.I('v_min_f32_dpp', MN[r], MN[r], MN[r], mods='row_ror:%d row_mask:0xf bank_mask:0xf' % sh)
    for r in range(4):
        e.I('v_mul_f32', MX[r], LOG2E, MX[r]); e.I('v_mul_f32', MN[r], LOG2E, MN[r])
    for i in range(8):
        r = i & 3
        sp = Kp[i] if i < 4 else KM[r]; sn = Kp[i] if i < 4 else KN[r]
        e.I('v_fma_f32', EP[i], sp, 's26', '-' + MX[r])
        e.I('v_fma_f32', EN[i], '-' + sn, 's26', MN[r])
    for i in range(8):
        e.I('v_exp_f32', EP[i], EP[i]); e.I('v_exp_f32', EN[i], EN[i])
    for r in range(4):
        e.I('v_add_f32', MX[r], EP[r], EP[4+r]); e.I('v_add_f32', MN[r], EN[r], EN[4+r])
    for sh in (8, 4, 2, 1):
        for r in range(4):
            e.I('v_add_f32_dpp', MX[r], MX[r], MX[r], mods='row_ror:%d row_mask:0xf bank_mask:0xf' % sh)
            e.I('v_add_f32_dpp', MN[r], MN[r], MN[r], mods='row_ror:%d row_mask:0xf bank_mask:0xf' % sh)
    for r in range(4):
        e.I('v_rcp_f32', MX[r], MX[r]); e.I('v_rcp_f32', MN[r], MN[r])
    for i in range(8):
        e.I('v_mul_f32', EP[i], EP[i], MX[i & 3]); e.I('v_mul_f32', EN[i], EN[i], MN[i & 3])
    PF = BR
    for ft in range(2):
        e.I('v_cvt_pk_bf16_f32', V(PF+2*ft), EP[4*ft], EP[4*ft+1])
        e.I('v_cvt_pk_bf16_f32', V(PF+2*ft+1), EP[4*ft+2], EP[4*ft+3])
        e.I('v_cvt_pk_bf16_f32', V(PF+4+2*ft), EN[4*ft], EN[4*ft+1])
        e.I('v_cvt_pk_bf16_f32', V(PF+4+2*ft+1), EN[4*ft+2], EN[4*ft+3])
    XCH = 0x18C00
    e.I('s_mul_i32', 's27', 's20', 3072); e.I('s_add_u32', 's27', 's27', XCH)
    e.I('v_lshl_add_u32', 'v9', 'v1', 3, 's27')
    for f in range(4):
        e.I('ds_write_b64', 'v9', V(PF+2*f, 2), mods='offset:%d' % (f*512))
    for dt in range(2):
        e.I('ds_write_b64', 'v9', V(VF+2*dt, 2), mods='offset:%d' % (2048+dt*512))
    P = [V(PQ+i) for i in range(8)]
    bf16_roundtrip(e, P, TT)
    PM = [V(A+i) for i in range(4)]; PN = [V(A+4+i) for i in range(4)]
    for r in range(4):
        e.I('v_cndmask_b32', PM[r], P[4+r], V(A+8), 's[48:49]')
        e.I('v_cndmask_b32', PN[r], P[4+r], V(A+9), 's[48:49]')
    mx, mn, tmp, tmp2 = V(A+10), V(A+11), V(A+12), V(A+15)
    e.I('v_max3_f32', mx, P[0], P[1], P[2]); e.I('v_min3_f32', mn, P[0], P[1], P[2])
    e.I('v_max3_f32', mx, mx, P[3], PM[0]); e.I('v_min3_f32', mn, mn, P[3], PN[0])
    e.I('v_max3_f32', mx, mx, PM[1], PM[2]); e.I('v_min3_f32', mn, mn, PN[1], PN[2])
    e.I('v_max_f32', mx, mx, PM[3]); e.I('v_min_f32', mn, mn, PN[3])
    e.waitcnt(lg=0)
    e.barrier()
    e.I('s_and_b32', 's27', 's20', 3); e.I('s_lshl_b32', 's27', 's27', 9)
    e.I('s_lshr_b32', 's28', 's20', 2); e.I('s_lshl_b32', 's28', 's28', 9); e.I('s_add_u32', 's28', 's28', 2048)
    e.I('s_add_u32', 's27', 's27', XCH); e.I('s_add_u32', 's28', 's28', XCH)
    e.I('v_lshl_add_u32', 'v9', 'v1', 3, 's27'); e.I('v_lshl_add_u32', 'v10', 'v1', 3, 's28')
    KA = BR+16; KB = BR+32
    for w in range(8):
        e.I('ds_read_b64', V(KA+2*w, 2), 'v9', mods='offset:%d' % (w*3072))
        e.I('ds_read_b64', V(KB+2*w, 2), 'v10', mods='offset:%d' % (w*3072))
    xreduce2 = [(mx, 'v_max_f32', tmp), (mn, 'v_min_f32', tmp2)]
    for sw in ('v_permlane16_swap_b32', 'v_permlane32_swap_b32'):
        for (v, op, t_) in xreduce2: e.I('v_mov_b32', t_, v)
        for (v, op, t_) in xreduce2: e.I(sw, v, t_)
        for (v, op, t_) in xreduce2: e.I(op, v, v, t_)
    e.I('v_mul_f32', mx, LOG2E, mx); e.I('v_mul_f32', mn, LOG2E, mn)
    for i in range(8):
        sp = P[i] if i < 4 else PM[i-4]; sn = P[i] if i < 4 else PN[i-4]
        e.I('v_fma_f32', EP[i], sp, 's26', '-' + mx)
        e.I('v_fma_f32', EN[i], '-' + sn, 's26', mn)
    KVR = BR
    for w in range(8):
        e.I('v_mfma_f32_16x16x16_bf16', V(KVR, 4), V(KA+2*w, 2), V(KB+2*w, 2), V(KVR, 4) if w else '0')
    for i in range(8):
        e.I('v_exp_f32', EP[i], EP[i]); e.I('v_exp_f32', EN[i], EN[i])
    sp_, sn_ = V(A+13), V(A+14)
    e.I('v_add_f32', sp_, EP[0], EP[1]); e.I('v_add_f32', sn_, EN[0], EN[1])
    for i in range(2, 8):
        e.I('v_add_f32', sp_, sp_, EP[i]); e.I('v_add_f32', sn_, sn_, EN[i])
    e.I('s_lshl_b32', 's27', 's22', 13); e.I('s_lshl_b32', 's28', 's20', 10)
    e.I('s_add_u32', 's27', 's27', 's28'); e.I('s_add_u32', 's27', 's27', KV)
    e.I('v_lshlrev_b32', 'v9', 2, 'v1')
    stamp(e, 4)
    e.I('v_readfirstlane_b32', 's28', 'v14')
    st_ = e.save()
    e.I('s_cmp_lg_u32', 's28', 0); e.I('s_cbranch_scc1', 'L_flagok_%s' % name)
    e.label('L_spin_%s' % name)
    e.I('s_sleep', 2)
    e.I('buffer_load_dword', 'v14', 'v15', 's[16:19]', 's31', mods='offen offset:64 sc1')
    e.wait_all()
    e.I('v_readfirstlane_b32', 's28', 'v14')
    e.I('s_cmp_eq_u32', 's28', 0); e.I('s_cbranch_scc1', 'L_spin_%s' % name)
    e.label('L_flagok_%s' % name)
    e.restore(st_)
    for r in range(4):
        e.I('buffer_atomic_add_f32', V(KVR+r), 'v9', 's[8:11]', 's27', mods='offen offset:%d' % (r*256))
    xreduce2 = [(sp_, 'v_add_f32', tmp), (sn_, 'v_add_f32', tmp2)]
    for sw in ('v_permlane16_swap_b32', 'v_permlane32_swap_b32'):
        for (v, op, t_) in xreduce2: e.I('v_mov_b32', t_, v)
        for (v, op, t_) in xreduce2: e.I(sw, v, t_)
        for (v, op, t_) in xreduce2: e.I(op, v, v, t_)
    e.I('v_rcp_f32', sp_, sp_); e.I('v_rcp_f32', sn_, sn_)
    for i in range(8):
        e.I('v_mul_f32', EP[i], EP[i], sp_); e.I('v_mul_f32', EN[i], EN[i], sn_)
    OQ = TT
    for i in range(4):
        e.I('v_cvt_pk_bf16_f32', V(OQ+i), EP[2*i], EP[2*i+1])
        e.I('v_cvt_pk_bf16_f32', V(OQ+4+i), EN[2*i], EN[2*i+1])
    e.I('s_lshl_b32', 's27', 's23', 4); e.I('s_add_u32', 's27', 's27', 's22')
    e.I('s_lshl_b32', 's27', 's27', 11); e.I('s_add_u32', 's27', 's27', PHIQ)
    e.I('buffer_store_dwordx4', V(OQ, 4), 'v5', 's[8:11]', 's27', mods='offen')
    e.I('buffer_store_dwordx4', V(OQ+4, 4), 'v5', 's[8:11]', 's27', mods='offen offset:1024')
    stamp(e, 5);
    if STAMPS: e.wait_all()
    stamp(e, 6); dump_stamps(e, 7)
    finish(e, name, 256, 512, 0x18C00 + 8*3072)

def reduce_epilogue(e, ACC, XIN, XOUT, bias_srd, final_srd, raw_srd=None):
    RX = 200; RB = 204
    e.I('s_lshr_b32', 's26', 's20', 1)
    e.I('s_and_b32', 's27', 's20', 1)
    e.I('s_lshl_b32', 's28', 's21', 2); e.I('s_add_u32', 's28', 's28', 's26')
    e.I('s_lshl_b32', 's29', 's22', 1); e.I('s_add_u32', 's29', 's29', 's27')
    e.I('s_mul_i32', 's30', 's28', 14336); e.I('s_lshl_b32', 's31', 's29', 10)
    e.I('s_add_u32', 's30', 's30', 's31')
    if raw_srd is None:
        e.I('s_add_u32', 's31', 's30', XIN)
        e.I('buffer_load_dwordx4', V(RX, 4), 'v5', 's[8:11]', 's31', mods='offen')
    else:
        e.I('v_mul_u32_u24', 'v6', 896, 'v3'); e.I('v_lshl_add_u32', 'v6', 'v4', 3, 'v6')
        e.I('s_mul_i32', 's31', 's28', 16*896); e.I('s_lshl_b32', 's26', 's29', 6); e.I('s_add_u32', 's31', 's31', 's26')
        e.I('s_lshr_b32', 's26', 's20', 1)
        e.I('buffer_load_dwordx2', V(RX, 2), 'v6', Sg(raw_srd, 4), 's31', mods='offen')
        e.I('buffer_load_dwordx2', V(RX+2, 2), 'v6', Sg(raw_srd, 4), 's31', mods='offen offset:32')
    if bias_srd is not None:
        e.I('v_lshlrev_b32', 'v6', 3, 'v4')
        e.I('s_lshl_b32', 's31', 's29', 6)
        e.I('buffer_load_dwordx2', V(RB, 2), 'v6', Sg(bias_srd, 4), 's31', mods='offen')
        e.I('buffer_load_dwordx2', V(RB+2, 2), 'v6', Sg(bias_srd, 4), 's31', mods='offen offset:32')
    e.I('s_lshl_b32', 's31', 's20', 14)
    e.I('v_add_u32', 'v9', 's31', 'v5')
    for i in range(16):
        e.I('ds_write_b128', 'v9', V(ACC+4*i, 4), mods='offset:%d' % (i*1024))
    e.waitcnt(lg=0)
    stamp(e, 5)
    e.barrier()
    stamp(e, 6)
    e.I('s_lshl_b32', 's31', 's26', 12); e.I('s_lshl_b32', 's26', 's27', 11); e.I('s_add_u32', 's31', 's31', 's26')
    e.I('v_add_u32', 'v9', 's31', 'v5')
    e.I('v_add_u32', 'v10', 0x10000, 'v9')
    R = 16
    for w in range(8):
        a, o = ('v9', w*16384) if w < 4 else ('v10', (w-4)*16384)
        e.I('ds_read_b128', V(R+8*w, 4), a, mods='offset:%d' % o)
        e.I('ds_read_b128', V(R+8*w+4, 4), a, mods='offset:%d' % (o+1024))
    for w in range(1, 8):
        for r in range(8):
            e.I('v_add_f32', V(R+r), V(R+r), V(R+8*w+r))
    Sm = [V(R+r) for r in range(8)]
    T = R+8
    bf16_roundtrip(e, Sm, T)
    if bias_srd is not None:
        for q in range(4):
            e.I('v_lshlrev_b32', V(T+2*q), 16, V(RB+q)); e.I('v_and_b32', V(T+2*q+1), 0xffff0000, V(RB+q))
        for r in range(8): e.I('v_add_f32', Sm[r], Sm[r], V(T+r))
        bf16_roundtrip(e, Sm, T)
    for q in range(4):
        e.I('v_lshlrev_b32', V(T+2*q), 16, V(RX+q)); e.I('v_and_b32', V(T+2*q+1), 0xffff0000, V(RX+q))
    for r in range(8): e.I('v_add_f32', Sm[r], Sm[r], V(T+r))
    for q in range(4):
        e.I('v_cvt_pk_bf16_f32', V(T+8+q), Sm[2*q], Sm[2*q+1])
    if final_srd is None:
        e.I('s_add_u32', 's31', 's30', XOUT)
        e.I('buffer_store_dwordx4', V(T+8, 4), 'v5', 's[8:11]', 's31', mods='offen')
    else:
        e.I('v_mul_u32_u24', 'v6', 896, 'v3')
        e.I('v_lshl_add_u32', 'v6', 'v4', 3, 'v6')
        e.I('s_mul_i32', 's31', 's28', 16*896); e.I('s_lshl_b32', 's26', 's29', 6); e.I('s_add_u32', 's31', 's31', 's26')
        e.I('buffer_store_dwordx2', V(T+8, 2), 'v6', Sg(final_srd, 4), 's31', mods='offen')
        e.I('buffer_store_dwordx2', V(T+10, 2), 'v6', Sg(final_srd, 4), 's31', mods='offen offset:32')

def split_wg_64(e):
    e.I('s_and_b32', 's26', 's2', 7); e.I('s_lshr_b32', 's27', 's2', 3)
    e.I('s_mul_i32', 's28', 's27', 37); e.I('s_lshr_b32', 's28', 's28', 8)
    e.I('s_mul_i32', 's22', 's28', 7); e.I('s_sub_u32', 's22', 's27', 's22')
    e.I('s_lshl_b32', 's21', 's26', 2); e.I('s_add_u32', 's21', 's21', 's28')

def gen_k2(name, XIN, XOUT, KV, first):
    e = Emitter(); e.name = name
    NWG = 252 if first else 224
    prologue(e, NWG, [(0, 12, S*D*2)] if first else [])
    if first:
        e.I('s_cmp_ge_u32', 's2', 224); e.I('s_cbranch_scc1', 'L_prep_%s' % name)
    split_wg_64(e)
    e.stampbase = 0x1E00000 + 0x8000*1 + (0x40000 if name.startswith('k2b') else 0); stamp(e, 0)
    e.I('v_lshlrev_b32', 'v7', 2, 'v1')
    e.I('v_cmp_eq_u32', 's[48:49]', 3, 'v4')
    ACC = 64
    KVF = 128
    PQ = 192
    WOF = 16
    NUM = 48
    for hh in range(2):
        e.I('s_lshl_b32', 's26', 's20', 1); e.I('s_add_u32', 's26', 's26', hh)
        e.I('s_lshl_b32', 's27', 's26', 13); e.I('s_add_u32', 's27', 's27', KV)
        for i in range(32):
            if i == 16: e.I('s_add_u32', 's27', 's27', 4096)
            e.I('buffer_load_dword', V(KVF+32*hh+i), 'v7', 's[8:11]', 's27', mods='offen offset:%d' % ((i % 16)*256))
        e.I('s_lshl_b32', 's27', 's21', 2+4+11)
        e.I('s_lshl_b32', 's28', 's26', 11); e.I('s_add_u32', 's27', 's27', 's28'); e.I('s_add_u32', 's27', 's27', PHIQ)
        for tt in range(4):
            if tt: e.I('s_add_u32', 's27', 's27', 32768)
            for ks in range(2):
                e.I('buffer_load_dwordx4', V(PQ+32*hh+8*tt+4*ks, 4), 'v5', 's[8:11]', 's27', mods='offen offset:%d' % (ks*1024))
        e.I('s_lshl_b32', 's27', 's22', 2+14)
        e.I('s_lshl_b32', 's28', 's26', 10); e.I('s_add_u32', 's27', 's27', 's28'); e.I('s_add_u32', 's27', 's27', WO_P)
        for nt in range(4):
            if nt: e.I('s_add_u32', 's27', 's27', 16384)
            e.I('buffer_load_dwordx4', V(WOF+16*hh+4*nt, 4), 'v5', 's[8:11]', 's27', mods='offen')
    stamp(e, 1)
    for hh in range(2):
        kb = KVF+32*hh
        for fr in range(4):
            for q in range(4):
                e.I('v_cvt_pk_bf16_f32', V(kb+4*fr+q), V(kb+8*fr+2*q), V(kb+8*fr+2*q+1))
        for half in range(2):
            for t2 in range(2):
                tt = 2*half+t2
                for dt in range(2):
                    for ks in range(2):
                        d = V(NUM+8*t2+4*dt, 4)
                        e.I('v_mfma_f32_16x16x32_bf16', d, V(kb+4*(dt*2+ks), 4), V(PQ+32*hh+8*tt+4*ks, 4), d if ks else '0')
            OF = kb+16
            TMP = kb+24
            for t2 in range(2):
                N = [V(NUM+8*t2+i) for i in range(8)]
                bf16_roundtrip(e, N, TMP)
                den = V(TMP+4); t1 = V(TMP+5)
                e.I('v_cndmask_b32', den, 0, N[4], 's[48:49]')
                xreduce(e, 'v_add_f32', den, t1)
                e.I('v_add_f32', den, 0x358637bd, den)
                e.I('v_cvt_pk_bf16_f32', den, den, den)
                e.I('v_lshlrev_b32', den, 16, den)
                e.I('v_rcp_f32', den, den)
                for i in range(8): e.I('v_mul_f32', N[i], N[i], den)
                for q in range(4):
                    e.I('v_cvt_pk_bf16_f32', V(OF+4*t2+q), N[2*q], N[2*q+1])
            for t2 in range(2):
                tt = 2*half+t2
                for nt in range(4):
                    d = V(ACC+4*(tt*4+nt), 4)
                    e.I('v_mfma_f32_16x16x32_bf16', d, V(WOF+16*hh+4*nt, 4), V(OF+4*t2, 4), d if hh else '0')
    e.I('s_nop', 7); e.I('s_nop', 7); stamp(e, 2)
    reduce_epilogue(e, ACC, XIN, XOUT, None, None, 12 if first else None)
    stamp(e, 3)
    if STAMPS: e.wait_all()
    stamp(e, 4); dump_stamps(e, 7)
    if first:
        e.I('s_branch', 'L_end_%s' % name)
        prep_section(e, name, ['w1', 'w2'], 224)
    finish(e, name, NWG, 512, 0x20000)

def gen_k3(name, XIN):
    e = Emitter(); e.name = name
    prologue(e, 224, [(48, 12, F*2)])
    e.stampbase = 0x1E00000 + 0x8000*2 + (0x40000 if name.startswith('k3b') else 0); stamp(e, 0)
    e.I('s_and_b32', 's26', 's2', 7); e.I('s_lshr_b32', 's27', 's2', 3)
    e.I('s_mul_i32', 's28', 's27', 37); e.I('s_lshr_b32', 's28', 's28', 8)
    e.I('s_mul_i32', 's29', 's28', 7); e.I('s_sub_u32', 's29', 's27', 's29')
    e.I('s_lshr_b32', 's21', 's26', 1); e.I('s_lshl_b32', 's21', 's21', 2); e.I('s_add_u32', 's21', 's21', 's28')
    e.I('s_and_b32', 's22', 's26', 1); e.I('s_mul_i32', 's22', 's22', 7); e.I('s_add_u32', 's22', 's22', 's29')
    e.I('s_lshl_b32', 's23', 's21', 3)
    e.I('s_add_u32', 's23', 's23', 's20')
    e.I('s_mul_i32', 's24', 's22', 14*8192)
    e.I('s_lshl_b32', 's25', 's20', 10)
    e.I('s_add_u32', 's24', 's24', 's25')
    e.I('s_add_u32', 's24', 's24', W1_P)
    XR = 16
    e.I('s_mul_i32', 's26', 's23', 14336)
    e.I('s_add_u32', 's26', 's26', XIN)
    groups = [(2*i, 2*i+2) for i in range(7)]
    PRE = 3
    marks = {}
    def group_ops(gi):
        ops = []
        for ks in range(*groups[gi]):
            def d(ks=ks):
                e.I('s_add_u32', 's28', 's25', ks*8192)
                e.I('s_mov_b32', 'm0', 's28')
                e.I('s_add_u32', 's27', 's24', ks*8192)
                e.I('buffer_load_dwordx4', 'v5', 's[8:11]', 's27', mods='offen lds')
            def xl(ks=ks):
                e.I('s_add_u32', 's29', 's26', (ks//4)*4096)
                e.I('buffer_load_dwordx4', V(XR+ks*4, 4), 'v5', 's[8:11]', 's29', mods='offen offset:%d' % ((ks % 4)*1024))
            ops += [d, xl]
        return ops
    for gi in range(PRE):
        for op in group_ops(gi): op()
        marks[gi] = e.vmc
    CSR = 180; B1R = 212
    e.I('v_lshlrev_b32', 'v6', 4, 'v4')
    e.I('v_lshlrev_b32', 'v7', 3, 'v4')
    e.I('s_lshl_b32', 's30', 's22', 9); e.I('s_add_u32', 's30', 's30', CS1)
    e.I('s_lshl_b32', 's31', 's22', 8)
    def small_ops(half):
        ops = []
        for t in range(4*half, 4*half+4):
            def a(t=t):
                e.I('buffer_load_dwordx4', V(CSR+4*t, 4), 'v6', 's[8:11]', 's30', mods='offen offset:%d' % (t*64))
                e.I('buffer_load_dwordx2', V(B1R+2*t, 2), 'v7', 's[12:15]', 's31', mods='offen offset:%d' % (t*32))
            ops.append(a)
        return ops
    ONES = 176
    for i in range(4): e.I('v_mov_b32', V(ONES+i), 0x3f803f80)
    masks = diag_masks(e, 40)
    e.I('v_add_u32', 'v8', 0x10000, 'v5')
    stamp(e, 1)
    BR = 72; ACC = 136
    def bread(ks):
        buf = BR + (ks & 1)*32
        for t in range(8):
            off = (ks*8+t)*1024
            if off < 65536: e.I('ds_read_b128', V(buf+4*t, 4), 'v5', mods='offset:%d' % off)
            else: e.I('ds_read_b128', V(buf+4*t, 4), 'v8', mods='offset:%d' % (off-65536))
    for gi, (k0, k1) in enumerate(groups):
        e.wait_mark(marks[gi])
        e.barrier()
        if gi == 0: stamp(e, 2)
        if gi+PRE < len(groups): pend = group_ops(gi+PRE)
        elif gi+PRE-len(groups) < 2: pend = small_ops(gi+PRE-len(groups))
        else: pend = []
        bread(k0)
        for ks in range(k0, k1):
            if ks+1 < k1: bread(ks+1)
            buf = BR + (ks & 1)*32
            x = V(XR+ks*4, 4)
            def C(i): return V(ACC+4*i, 4) if ks else '0'
            e.I('v_mfma_f32_16x16x32_bf16', V(ACC+32, 4), V(ONES, 4), x, C(8))
            e.I('v_mfma_f32_16x16x32_bf16', V(ACC+36, 4), x, x, C(9))
            if pend: pend.pop(0)()
            for t in range(8):
                e.I('v_mfma_f32_16x16x32_bf16', V(ACC+4*t, 4), V(buf+4*t, 4), x, C(t))
                if t == 3 and pend: pend.pop(0)()
        while pend: pend.pop(0)()
        if gi+PRE < len(groups): marks[gi+PRE] = e.vmc
    T = 228
    stamp(e, 3)
    vNM, vRS = V(T), V(T+1)
    ln_stats(e, ACC+32, ACC+36, vNM, vRS, V(T+2), V(T+3), masks)
    e.I('s_mul_i32', 's26', 's23', 56*1024); e.I('s_lshl_b32', 's27', 's22', 12)
    e.I('s_add_u32', 's26', 's26', 's27'); e.I('s_add_u32', 's26', 's26', HF)
    e.I('s_mov_b32', 's34', 0x3d372713)
    e.I('s_mov_b32', 's35', 0xc0135761)
    W = 16
    for p in range(4):
        Hh = [V(W+16*(p % 2)+r) for r in range(8)]
        U = [V(W+16*(p % 2)+8+r) for r in range(8)]
        for r in range(8): e.I('v_mul_f32', Hh[r], vNM, V(CSR+8*p+r))
        for r in range(8): e.I('v_fmac_f32', Hh[r], V(ACC+8*p+r), vRS)
        bf16_roundtrip(e, Hh, T+4)
        for q in range(4):
            e.I('v_lshlrev_b32', U[2*q], 16, V(B1R+4*p+q)); e.I('v_and_b32', U[2*q+1], 0xffff0000, V(B1R+4*p+q))
        for r in range(8): e.I('v_add_f32', Hh[r], Hh[r], U[r])
        bf16_roundtrip(e, Hh, T+4)
        for r in range(8): e.I('v_mul_f32', U[r], Hh[r], Hh[r])
        for r in range(8): e.I('v_fma_f32', U[r], U[r], 's34', 1.0)
        for r in range(8): e.I('v_mul_f32', U[r], U[r], Hh[r])
        for r in range(8): e.I('v_mul_f32', U[r], 's35', U[r])
        for r in range(8): e.I('v_exp_f32', U[r], U[r])
        for r in range(8): e.I('v_add_f32', U[r], 1.0, U[r])
        for r in range(8): e.I('v_rcp_f32', U[r], U[r])
        for r in range(8): e.I('v_mul_f32', Hh[r], Hh[r], U[r])
        O = T+8+4*(p % 2)
        for q in range(4): e.I('v_cvt_pk_bf16_f32', V(O+q), Hh[2*q], Hh[2*q+1])
        e.I('buffer_store_dwordx4', V(O, 4), 'v5', 's[8:11]', 's26', mods='offen offset:%d' % (p*1024) + STMOD)
    stamp(e, 4)
    if STAMPS: e.wait_all()
    stamp(e, 5); dump_stamps(e, 6)
    finish(e, name, 224, 512, 14*8192)

def gen_k4(name, XIN, XOUT, final):
    e = Emitter(); e.name = name
    ptrs = [(64, 12, D*2)]
    if final: ptrs.append((72, 16, S*D*2))
    NWG = 224 if final else 237
    prologue(e, NWG, ptrs)
    if not final:
        e.I('s_cmp_ge_u32', 's2', 224); e.I('s_cbranch_scc1', 'L_prep_%s' % name)
    split_wg_64(e)
    e.stampbase = 0x1E00000 + 0x8000*3 + (0x40000 if name.startswith('k4b') else 0); stamp(e, 0)
    ACC = 16
    AR = 80
    BRg = 144
    e.I('s_mul_i32', 's26', 's22', 4*56*1024); e.I('s_mul_i32', 's27', 's20', 7*1024)
    e.I('s_add_u32', 's26', 's26', 's27'); e.I('s_add_u32', 's26', 's26', W2_P)
    e.I('s_mul_i32', 's28', 's21', 4*56*1024); e.I('s_add_u32', 's28', 's28', 's27'); e.I('s_add_u32', 's28', 's28', HF)
    def loads(k):
        sl = k % 4
        for i in range(4):
            e.I('s_add_u32', 's29', 's28', i*56*1024 + k*1024)
            e.I('buffer_load_dwordx4', V(BRg+16*sl+4*i, 4), 'v5', 's[8:11]', 's29', mods='offen')
            e.I('s_add_u32', 's29', 's26', i*56*1024 + k*1024)
            e.I('buffer_load_dwordx4', V(AR+16*sl+4*i, 4), 'v5', 's[8:11]', 's29', mods='offen')
    for k in range(4): loads(k)
    stamp(e, 1)
    for k in range(7):
        sl = k % 4
        for tt in range(4):
            for nt in range(4):
                d = V(ACC+4*(tt*4+nt), 4)
                e.I('v_mfma_f32_16x16x32_bf16', d, V(AR+16*sl+4*nt, 4), V(BRg+16*sl+4*tt, 4), d if k else '0')
        if k+4 < 7: loads(k+4)
    e.I('s_nop', 7); e.I('s_nop', 7); stamp(e, 2)
    reduce_epilogue(e, ACC, XIN, XOUT, 12, 16 if final else None)
    stamp(e, 3)
    if STAMPS: e.wait_all()
    stamp(e, 4); dump_stamps(e, 7)
    if not final:
        e.I('s_branch', 'L_end_%s' % name)
        prep_section(e, name, ['wqkv', 'wphi'], 224)
    finish(e, name, NWG, 512, 0x20000)

def build():
    gen_k1('k1a_kernel', XF0, KVACC, True)
    gen_k2('k2a_kernel', XF0, XF1, KVACC, True)
    gen_k3('k3a_kernel', XF1)
    gen_k4('k4a_kernel', XF1, XF2, False)
    gen_k1('k1b_kernel', XF2, KVACC+0x20000, False)
    gen_k2('k2b_kernel', XF2, XF3, KVACC+0x20000, False)
    gen_k3('k3b_kernel', XF3)
    gen_k4('k4b_kernel', XF3, None, True)
    out = []
    hdr = open('cdna_kernels/%s.s.ref' % KNAME[:-7]).read().split('\n')
    for l in hdr:
        if l.startswith('; Override') : break
        out.append(l)
    for (name, grid, block, lds, text, mv, ms, ni) in kernels:
        out.append('; @launch kernel=%s grid=(%d,1,1) block=(%d,1,1) lds=%d' % (name, grid, block, lds))
    out.append('.amdgcn_target "amdgcn-amd-amdhsa--gfx950"')
    out.append('.text')
    for (name, grid, block, lds, text, mv, ms, ni) in kernels:
        out.append('.globl %s' % name)
        out.append('.p2align 8')
        out.append('.type %s,@function' % name)
        out.append('%s:' % name)
        out.append(text)
    out.append('.section .rodata,"a"')
    for (name, grid, block, lds, text, mv, ms, ni) in kernels:
        nv = ((mv + 1 + 7)//8)*8
        out.append('.p2align 6')
        out.append('.amdhsa_kernel %s' % name)
        out.append('  .amdhsa_next_free_vgpr %d' % nv)
        out.append('  .amdhsa_next_free_sgpr %d' % max(ms+1, 16))
        out.append('  .amdhsa_accum_offset %d' % nv)
        out.append('  .amdhsa_group_segment_fixed_size 0')
        out.append('  .amdhsa_kernarg_size 96')
        out.append('  .amdhsa_user_sgpr_count 2')
        out.append('  .amdhsa_user_sgpr_kernarg_segment_ptr 1')
        out.append('  .amdhsa_system_sgpr_workgroup_id_x 1')
        out.append('.end_amdhsa_kernel')
        sys.stderr.write('%s: %d instr, vgpr %d sgpr %d\n' % (name, ni, mv+1, ms+1))
    return '\n'.join(out) + '\n'

if __name__ == '__main__':
    if len(sys.argv) > 2: STAMPS = True
    txt = build()
    open(sys.argv[1], 'w').write(txt)
```

```python
import sys
from emit import Emitter
from layout import *

KNAME = 'interleave_layers__linear_kernel_hedgehog__dense_activation_gelu__prompt_kernel'
LOG2E = 0x3fb8aa3b
kernels = []

def V(i, n=1):
    return 'v%d' % i if n == 1 else 'v[%d:%d]' % (i, i+n-1)
def Sg(i, n=1):
    return 's%d' % i if n == 1 else 's[%d:%d]' % (i, i+n-1)

def prologue(e, nwg, ptrs):
    e.I('s_cmp_ge_u32', 's2', nwg)
    e.I('s_cbranch_scc1', 'L_end_%s' % e.name)
    if STAMPS: e.I('s_memrealtime', 's[90:91]')
    e.I('s_load_dwordx2', 's[4:5]', 's[0:1]', 88)
    tmp = 28
    for (off, srd, nb) in ptrs:
        e.I('s_load_dwordx2', Sg(srd, 2), 's[0:1]', off)
    e.I('v_and_b32', 'v1', 63, 'v0')
    e.I('v_lshrrev_b32', 'v2', 6, 'v0')
    e.I('v_readfirstlane_b32', 's20', 'v2')
    e.I('v_and_b32', 'v3', 15, 'v1')
    e.I('v_lshrrev_b32', 'v4', 4, 'v1')
    e.I('v_lshlrev_b32', 'v5', 4, 'v1')
    e.waitcnt(lg=0)
    e.I('s_mov_b32', 's8', 's4')
    e.I('s_and_b32', 's9', 's5', 0xffff)
    e.I('s_mov_b32', 's10', WS_BYTES)
    e.I('s_mov_b32', 's11', 0x20000)
    for (off, srd, nb) in ptrs:
        e.I('s_and_b32', Sg(srd+1), Sg(srd+1), 0xffff)
        e.I('s_mov_b32', Sg(srd+2), nb)
        e.I('s_mov_b32', Sg(srd+3), 0x20000)

STAMPS = False
KIDX = {'prep_kernel': 0, 'k1a_kernel': 1, 'k2a_kernel': 2, 'k3a_kernel': 3, 'k4a_kernel': 4, 'k1b_kernel': 5, 'k2b_kernel': 6, 'k3b_kernel': 7, 'k4b_kernel': 8}
STMOD = ' sc1'
def stamp(e, idx):
    if not STAMPS: return
    e.I('s_memtime', Sg(60+2*idx, 2))
    e.waitcnt(lg=0)
def dump_stamps(e, n):
    if not STAMPS: return
    e.I('s_lshl_b32', 's26', 's2', 3); e.I('s_add_u32', 's26', 's26', 's20')
    e.I('s_lshl_b32', 's26', 's26', 6); e.I('s_add_u32', 's26', 's26', 0x2000000 + KIDX[e.name]*0x40000)
    e.I('v_mov_b32', 'v6', 0)
    for i in range(n):
        e.I('v_mov_b32', 'v7', Sg(60+2*i))
        e.I('buffer_store_dword', 'v7', 'v6', 's[8:11]', 's26', mods='offen offset:%d' % (4*i))
    e.I('s_memrealtime', 's[92:93]')
    e.I('v_mov_b32', 'v7', 's90'); e.I('buffer_store_dword', 'v7', 'v6', 's[8:11]', 's26', mods='offen offset:56')
    e.I('v_mov_b32', 'v7', 's92'); e.I('buffer_store_dword', 'v7', 'v6', 's[8:11]', 's26', mods='offen offset:60')

def finish(e, name, grid, block, lds):
    e.label('L_end_%s' % name)
    e.raw('    s_endpgm')
    kernels.append((name, grid, block, lds, e.text(), e.max_v, e.max_s, e.ninstr))

def xreduce(e, op, v, tmp):
    e.I('v_mov_b32', tmp, v); e.I('v_permlane16_swap_b32', v, tmp); e.I(op, v, v, tmp)
    e.I('v_mov_b32', tmp, v); e.I('v_permlane32_swap_b32', v, tmp); e.I(op, v, v, tmp)

def rowreduce(e, op, regs):
    for sh in (8, 4, 2, 1):
        for r in regs:
            e.I(op + '_dpp', r, r, r, mods='row_ror:%d row_mask:0xf bank_mask:0xf' % sh)

def bf16_roundtrip(e, regs, tmpbase):
    for i in range(0, len(regs), 2):
        t = V(tmpbase + i//2)
        e.I('v_cvt_pk_bf16_f32', t, regs[i], regs[i+1])
    for i in range(0, len(regs), 2):
        t = V(tmpbase + i//2)
        e.I('v_lshlrev_b32', regs[i], 16, t)
        e.I('v_and_b32', regs[i+1], 0xffff0000, t)

def ln_stats(e, aS1, aS2, vmean_n, vrstd, t0, t1, masks):
    sD1, sD2, sD3, sDg = masks
    e.I('v_cndmask_b32', t0, V(aS2), V(aS2+1), sD1)
    e.I('v_cndmask_b32', t0, t0, V(aS2+2), sD2)
    e.I('v_cndmask_b32', t0, t0, V(aS2+3), sD3)
    e.I('v_cndmask_b32', t0, 0, t0, sDg)
    xreduce(e, 'v_add_f32', t0, t1)
    inv = 0x3b124925
    e.I('v_mul_f32', t1, inv, V(aS1))
    e.I('v_mul_f32', t0, inv, t0)
    e.I('v_fma_f32', t0, '-' + t1, t1, t0)
    e.I('v_max_f32', t0, 0, t0)
    e.I('v_add_f32', t0, 0x3727c5ac, t0)
    e.I('v_rsq_f32', vrstd, t0)
    e.I('v_mul_f32', vmean_n, t1, vrstd)
    e.I('v_sub_f32', vmean_n, 0, vmean_n)

def diag_masks(e, base):
    e.I('v_and_b32', 'v12', 3, 'v3')
    e.I('v_lshrrev_b32', 'v13', 2, 'v3')
    e.I('v_cmp_eq_u32', Sg(base, 2), 1, 'v12')
    e.I('v_cmp_eq_u32', Sg(base+2, 2), 2, 'v12')
    e.I('v_cmp_eq_u32', Sg(base+4, 2), 3, 'v12')
    e.I('v_cmp_eq_u32', Sg(base+6, 2), 'v4', 'v13')
    return [Sg(base+2*i, 2) for i in range(4)]

def prep_section(e, name, kinds, first_wg):
    e.label('L_prep_%s' % name)
    srcs = {'wqkv': (8, 16, D*3*D*2), 'wphi': (16, 24, H*DH*DH*2), 'w1': (40, 32, D*F*2), 'w2': (56, 36, F*D*2)}
    for k in kinds:
        off, srd, nb = srcs[k]
        e.I('s_load_dwordx2', Sg(srd, 2), 's[0:1]', off)
    e.waitcnt(lg=0)
    for k in kinds:
        off, srd, nb = srcs[k]
        e.I('s_and_b32', Sg(srd+1), Sg(srd+1), 0xffff)
        e.I('s_mov_b32', Sg(srd+2), nb); e.I('s_mov_b32', Sg(srd+3), 0x20000)
    e.I('s_sub_u32', 's21', 's2', first_wg); e.I('s_lshl_b32', 's21', 's21', 3); e.I('s_add_u32', 's21', 's21', 's20')
    OOB = 0x40000000
    def pack(srd, stride, nks, ksrow, outbase, s_idx, colsum_base, s_out=None, ksmul=1024):
        R = 16; R2 = 96
        for ks in range(nks):
            for j in range(8):
                e.I('s_add_u32', 's23', 's22', (ksrow*ks + (j & 3))*stride)
                e.I('buffer_load_ushort', V(R2 + ks*8 + j), 'v8' if j < 4 else 'v9', Sg(srd, 4), 's23', mods='offen')
        for ks in range(nks):
            for q in range(4):
                e.I('v_lshl_or_b32', V(R + ks*4 + q), V(R2 + ks*8 + 2*q + 1), 16, V(R2 + ks*8 + 2*q))
        if s_out is None:
            e.I('s_mul_i32', 's23', s_idx, nks*1024)
            e.I('s_add_u32', 's23', 's23', outbase)
        else:
            e.I('s_add_u32', 's23', s_out, outbase)
        if colsum_base is not None:
            e.I('v_mov_b32', 'v10', 0)
        for ks in range(nks):
            if ks: e.I('s_add_u32', 's23', 's23', ksmul)
            e.I('buffer_store_dwordx4', V(R+ks*4, 4), 'v5', 's[8:11]', 's23', mods='offen')
            if colsum_base is not None:
                for q in range(4):
                    e.I('v_lshlrev_b32', 'v11', 16, V(R+ks*4+q))
                    e.I('v_and_b32', 'v12', 0xffff0000, V(R+ks*4+q))
                    e.I('v_add_f32', 'v10', 'v10', 'v11')
                    e.I('v_add_f32', 'v10', 'v10', 'v12')
        if colsum_base is not None:
            xreduce(e, 'v_add_f32', 'v10', 'v11')
            e.I('v_lshlrev_b32', 'v11', 2, 'v3')
            e.I('s_lshl_b32', 's23', s_idx, 6)
            e.I('s_add_u32', 's23', 's23', colsum_base)
            e.I('buffer_store_dword', 'v10', 'v11', 's[8:11]', 's23', mods='offen')
        e.I('s_branch', 'L_end_%s' % name)
    if 'w1' in kinds:
        e.I('s_cmp_lt_u32', 's21', 112); e.I('s_cbranch_scc1', 'L_p_w1_%s' % name)
        e.I('s_cmp_lt_u32', 's21', 224); e.I('s_cbranch_scc1', 'L_p_w2_%s' % name)
        e.I('s_branch', 'L_end_%s' % name)
        e.label('L_p_w1_%s' % name)
        e.I('s_mov_b32', 's40', 's21')
        e.I('s_lshl_b32', 's22', 's40', 5)
        e.I('s_mov_b32', 's46', 4*3584)
        e.I('v_mul_lo_u32', 'v8', 's46', 'v4')
        e.I('v_lshl_add_u32', 'v8', 'v3', 1, 'v8')
        e.I('v_add_u32', 'v9', 16*3584, 'v8')
        e.I('s_lshr_b32', 's47', 's40', 3); e.I('s_mul_i32', 's47', 's47', 14*8192)
        e.I('s_and_b32', 's46', 's40', 7); e.I('s_lshl_b32', 's46', 's46', 10); e.I('s_add_u32', 's47', 's47', 's46')
        pack(32, 3584, 14, 32, W1_P, 's40', CS1, 's47', 8192)
        e.label('L_p_w2_%s' % name)
        e.I('s_sub_u32', 's40', 's21', 112)
        e.I('s_lshr_b32', 's41', 's40', 2)
        e.I('s_and_b32', 's42', 's40', 3)
        e.I('s_lshl_b32', 's22', 's41', 5)
        e.I('s_mul_i32', 's43', 's42', 448*896)
        e.I('s_add_u32', 's22', 's22', 's43')
        e.I('s_mov_b32', 's46', 4*896)
        e.I('v_mul_lo_u32', 'v8', 's46', 'v4')
        e.I('v_lshl_add_u32', 'v8', 'v3', 1, 'v8')
        e.I('v_add_u32', 'v9', 16*896, 'v8')
        pack(36, 896, 14, 32, W2_P, 's40', None)
    else:
        e.I('s_cmp_lt_u32', 's21', 96); e.I('s_cbranch_scc1', 'L_p_wqkv_%s' % name)
        e.I('s_cmp_lt_u32', 's21', 98); e.I('s_cbranch_scc1', 'L_p_wphi_%s' % name)
        e.I('s_branch', 'L_end_%s' % name)
        e.label('L_p_wqkv_%s' % name)
        e.I('s_mul_i32', 's40', 's21', 43); e.I('s_lshr_b32', 's40', 's40', 8)
        e.I('s_mul_i32', 's41', 's40', 6); e.I('s_sub_u32', 's41', 's21', 's41')
        e.I('s_lshr_b32', 's42', 's41', 1)
        e.I('s_and_b32', 's43', 's41', 1)
        e.I('s_mul_i32', 's44', 's42', 448); e.I('s_mul_i32', 's45', 's40', 28)
        e.I('s_add_u32', 's44', 's44', 's45'); e.I('s_lshl_b32', 's45', 's43', 4)
        e.I('s_add_u32', 's44', 's44', 's45')
        e.I('s_lshl_b32', 's22', 's44', 1)
        e.I('v_add_u32', 'v6', 's45', 'v3')
        e.I('v_cmp_gt_u32', 'vcc', 28, 'v6')
        e.I('s_mov_b32', 's46', 4*2688)
        e.I('v_mul_lo_u32', 'v8', 's46', 'v4')
        e.I('v_lshl_add_u32', 'v8', 'v3', 1, 'v8')
        e.I('v_mov_b32', 'v7', OOB)
        e.I('v_cndmask_b32', 'v8', 'v7', 'v8', 'vcc')
        e.I('v_add_u32', 'v9', 16*2688, 'v8')
        e.I('s_mul_i32', 's47', 's40', 86016); e.I('s_lshl_b32', 's46', 's41', 10); e.I('s_add_u32', 's47', 's47', 's46')
        pack(16, 2688, 14, 32, WQKV_P, 's21', CSQKV, 's47', 6144)
        e.label('L_p_wphi_%s' % name)
        e.I('s_sub_u32', 's40', 's21', 96)
        e.I('s_mul_i32', 's22', 's40', 8*1568)
        e.I('v_mul_u32_u24', 'v8', 4*56, 'v4')
        e.I('v_lshl_add_u32', 'v8', 'v3', 1, 'v8')
        e.I('v_mov_b32', 'v7', OOB)
        e.I('v_add_u32', 'v9', 16*56, 'v8')
        e.I('v_cmp_gt_u32', 'vcc', 3, 'v4')
        e.I('v_cndmask_b32', 'v9', 'v7', 'v9', 'vcc')
        e.I('v_add_u32', 'v10', 32, 'v8')
        e.I('v_add_u32', 'v11', 32, 'v9')
        e.I('v_cmp_gt_u32', 'vcc', 12, 'v3')
        e.I('v_cndmask_b32', 'v10', 'v7', 'v10', 'vcc')
        e.I('v_cndmask_b32', 'v11', 'v7', 'v11', 'vcc')
        for hh in range(8):
            for ft in range(2):
                for j in range(8):
                    e.I('s_add_u32', 's23', 's22', hh*1568 + (j & 3)*56)
                    voff = ['v8', 'v9', 'v10', 'v11'][ft*2 + (j >> 2)]
                    e.I('buffer_load_ushort', V(96 + (hh*2+ft)*8 + j), voff, 's[24:27]', 's23', mods='offen')
        for fr in range(16):
            for q in range(4):
                e.I('v_lshl_or_b32', V(16 + fr*4 + q), V(96 + fr*8 + 2*q + 1), 16, V(96 + fr*8 + 2*q))
        e.I('s_lshl_b32', 's23', 's40', 14)
        e.I('s_add_u32', 's23', 's23', WPHI_P)
        for fr in range(16):
            if fr % 4 == 0 and fr: e.I('s_add_u32', 's23', 's23', 4096)
            e.I('buffer_store_dwordx4', V(16+fr*4, 4), 'v5', 's[8:11]', 's23', mods='offen offset:%d' % ((fr % 4)*1024))

def gen_k1(name, XIN, KV, first):
    e = Emitter(); e.name = name
    ptrs = [(80, 16, 256)]
    if first: ptrs += [(8, 12, D*3*D*2), (16, 32, H*DH*DH*2), (0, 36, S*D*2), (24, 96, D*D*2)]
    prologue(e, 256, ptrs)
    stamp(e, 0)
    e.I('s_and_b32', 's26', 's2', 7); e.I('s_lshr_b32', 's27', 's2', 3)
    e.I('s_lshr_b32', 's21', 's26', 1); e.I('s_lshl_b32', 's21', 's21', 2); e.I('s_lshr_b32', 's28', 's27', 3); e.I('s_add_u32', 's21', 's21', 's28')
    e.I('s_and_b32', 's22', 's26', 1); e.I('s_lshl_b32', 's22', 's22', 3); e.I('s_and_b32', 's28', 's27', 7); e.I('s_add_u32', 's22', 's22', 's28')
    e.I('s_lshl_b32', 's23', 's21', 3)
    e.I('s_add_u32', 's23', 's23', 's20')
    if first:
        XR = 16
        OOB = 0x40000000
        e.I('s_mul_i32', 's26', 's23', 14336)
        e.I('v_mul_u32_u24', 'v9', 147, 'v1'); e.I('v_lshrrev_b32', 'v9', 11, 'v9')
        e.I('v_mul_u32_u24', 'v10', 14, 'v9'); e.I('v_sub_u32', 'v10', 'v1', 'v10')
        e.I('v_mul_u32_u24', 'v6', 2688, 'v9')
        e.I('v_lshrrev_b32', 'v9', 2, 'v10'); e.I('v_mul_u32_u24', 'v9', 896, 'v9'); e.I('v_add_u32', 'v6', 'v6', 'v9')
        e.I('v_and_b32', 'v9', 3, 'v10'); e.I('v_lshl_add_u32', 'v6', 'v9', 4, 'v6')
        e.I('v_cmp_gt_u32', 'vcc', 12, 'v10')
        e.I('v_mov_b32', 'v9', OOB)
        e.I('v_cndmask_b32', 'v6', 'v9', 'v6', 'vcc')
        e.I('s_mul_i32', 's24', 's20', 4*2688); e.I('s_mul_i32', 's27', 's22', 56); e.I('s_add_u32', 's24', 's24', 's27')
        e.I('s_mul_i32', 's25', 's20', 4*224)
        e.I('s_mov_b32', 's58', -1); e.I('s_mov_b32', 's59', 0x00ffffff)
        e.I('v_mul_u32_u24', 'v7', 896, 'v3'); e.I('v_lshl_add_u32', 'v7', 'v4', 4, 'v7')
        def dma(ks):
            e.I('s_add_u32', 's28', 's25', ks*7168)
            e.I('s_mov_b32', 'm0', 's28')
            e.I('s_add_u32', 's27', 's24', ks*32*2688)
            e.I('s_mov_b64', 'exec', 's[58:59]')
            e.I('buffer_load_dwordx4', 'v6', 's[12:15]', 's27', mods='offen lds')
            e.I('s_mov_b64', 'exec', -1)
        def xl(ks):
            e.I('buffer_load_dwordx4', V(XR+ks*4, 4), 'v7', 's[36:39]', 's26', mods='offen offset:%d' % (ks*64))
        groups = [(2*i, 2*i+2) for i in range(7)]
        PRE = 3
        marks = {}
        def group_ops(gi):
            ops = []
            for ks in range(*groups[gi]):
                ops += [lambda ks=ks: dma(ks), lambda ks=ks: xl(ks)]
            return ops
        e.I('v_mov_b32', 'v15', 0)
        e.I('s_lshl_b32', 's31', 's22', 2)
        e.I('s_or_b32', 's56', 's20', 's21')
        e.I('s_cmp_lg_u32', 's56', 0); e.I('s_cbranch_scc1', 'L_noclaim_%s' % name)
        for i in range(4): e.I('v_mov_b32', V(120+i), 0)
        e.I('s_lshl_b32', 's27', 's22', 13); e.I('s_add_u32', 's27', 's27', KV)
        for i in range(8):
            if i == 4: e.I('s_add_u32', 's27', 's27', 4096)
            e.I('buffer_store_dwordx4', V(120, 4), 'v5', 's[8:11]', 's27', mods='offen offset:%d sc1' % ((i % 4)*1024))
        e.label('L_noclaim_%s' % name)
        e.vm = []; e.vmc = 0
        for gi in range(PRE):
            for op in group_ops(gi): op()
            marks[gi] = e.vmc
        CSR = 156; CSV = 172; WPH = 216; WG_ = 224
        e.I('v_mul_u32_u24', 'v240', 4*56, 'v4'); e.I('v_lshl_add_u32', 'v240', 'v3', 1, 'v240')
        e.I('v_add_u32', 'v241', 16*56, 'v240')
        e.I('v_cmp_gt_u32', 'vcc', 3, 'v4'); e.I('v_cndmask_b32', 'v241', 'v9', 'v241', 'vcc')
        e.I('v_add_u32', 'v242', 32, 'v240'); e.I('v_add_u32', 'v243', 32, 'v241')
        e.I('v_cmp_gt_u32', 'vcc', 12, 'v3'); e.I('v_cndmask_b32', 'v242', 'v9', 'v242', 'vcc'); e.I('v_cndmask_b32', 'v243', 'v9', 'v243', 'vcc')
        e.I('s_mul_i32', 's30', 's22', 1568)
        def small_ops(part):
            ops = []
            for q in range(4):
                def a(q=q):
                    for jj in range(2):
                        j = 2*q + jj
                        e.I('s_add_u32', 's29', 's30', (j & 3)*56)
                        e.I('buffer_load_ushort', V(WG_+8*part+j), V(240+2*part+(j >> 2)), 's[32:35]', 's29', mods='offen')
                ops.append(a)
            return ops
        if True:
            st0 = e.save()
            e.I('s_cmp_ge_u32', 's2', 224); e.I('s_cbranch_scc1', 'L_nowo_%s' % name)
            e.I('s_cmp_ge_u32', 's20', 2); e.I('s_cbranch_scc1', 'L_nowo_%s' % name)
            e.I('s_lshl_b32', 's27', 's2', 1); e.I('s_add_u32', 's27', 's27', 's20')
            e.I('s_lshr_b32', 's28', 's27', 4); e.I('s_and_b32', 's29', 's27', 15)
            e.I('s_lshl_b32', 's28', 's28', 5); e.I('s_mul_i32', 's29', 's29', 28*896); e.I('s_add_u32', 's28', 's28', 's29')
            e.I('v_mul_u32_u24', 'v244', 4*896, 'v4'); e.I('v_lshl_add_u32', 'v244', 'v3', 1, 'v244')
            e.I('v_add_u32', 'v245', 16*896, 'v244')
            e.I('v_cmp_gt_u32', 'vcc', 3, 'v4'); e.I('v_cndmask_b32', 'v245', 'v9', 'v245', 'vcc')
            for j in range(8):
                e.I('s_add_u32', 's29', 's28', (j & 3)*896)
                e.I('buffer_load_ushort', V(246+j), 'v244' if j < 4 else 'v245', 's[96:99]', 's29', mods='offen')
            for q in range(4):
                e.I('v_lshl_or_b32', V(180+q), V(246+2*q+1), 16, V(246+2*q))
            e.I('s_lshl_b32', 's27', 's27', 10); e.I('s_add_u32', 's27', 's27', WO_P)
            e.I('buffer_store_dwordx4', V(180, 4), 'v5', 's[8:11]', 's27', mods='offen')
            e.label('L_nowo_%s' % name)
            e.restore(st0)
        ONES = 152
        for i in range(4): e.I('v_mov_b32', V(ONES+i), 0x3f803f80)
        masks = diag_masks(e, 40)
        e.I('v_cmp_eq_u32', 's[48:49]', 3, 'v4')
        e.I('v_cmp_eq_u32', 's[50:51]', 12, 'v3')
        e.I('v_cmp_le_u32', 's[52:53]', 12, 'v3')
        e.I('v_and_b32', 'v10', 1, 'v4')
        e.I('v_cmp_eq_u32', 's[94:95]', 1, 'v10')
        e.I('v_lshl_add_u32', 'v8', 'v4', 3, 'v13')
        e.I('v_lshl_add_u32', 'v254', 'v10', 2, 'v8')
        e.I('v_xor_b32', 'v10', 1, 'v10'); e.I('v_lshl_add_u32', 'v255', 'v10', 2, 'v8')
        e.I('v_mul_u32_u24', 'v8', 224, 'v254'); e.I('v_lshl_add_u32', 'v8', 'v12', 3, 'v8')
        e.I('v_mul_u32_u24', 'v11', 224, 'v255'); e.I('v_lshl_add_u32', 'v11', 'v12', 3, 'v11')
        e.I('v_add_u32', 'v254', 8*7168, 'v8'); e.I('v_add_u32', 'v255', 8*7168, 'v11')
        stamp(e, 1)
        BR = 72; ACC = 120
        def bread(ks):
            buf = BR + (ks & 1)*24
            b1, b2, k2 = ('v8', 'v11', ks) if ks < 8 else ('v254', 'v255', ks-8)
            for t in range(6):
                off = k2*7168 + (t >> 1)*64 + (t & 1)*32
                e.I('ds_read_b64_tr_b16', V(buf+4*t, 2), b1, mods='offset:%d' % off)
                e.I('ds_read_b64_tr_b16', V(buf+4*t+2, 2), b2, mods='offset:%d' % off)
        e.wait_mark(marks[0])
        e.barrier()
        stamp(e, 2)
        st_ = e.save()
        e.I('s_cmp_lg_u32', 's56', 0); e.I('s_cbranch_scc1', 'L_nozero_%s' % name)
        e.I('s_mov_b64', 'exec', 1)
        e.I('v_mov_b32', 'v14', 1)
        e.I('buffer_store_dword', 'v14', 'v15', 's[16:19]', 's31', mods='offen offset:64 sc1')
        e.I('s_mov_b64', 'exec', -1)
        e.label('L_nozero_%s' % name)
        e.restore(st_)
        bread(0)
        for gi, (k0, k1) in enumerate(groups):
            if gi+PRE < len(groups): pend = group_ops(gi+PRE)
            elif gi+PRE-len(groups) < 2: pend = small_ops(gi+PRE-len(groups))
            else: pend = []
            for ks in range(k0, k1):
                if ks+1 == k1 and gi+1 < len(groups):
                    e.wait_mark(marks[gi+1])
                    e.barrier()
                if ks+1 < 14: bread(ks+1)
                buf = BR + (ks & 1)*24
                x = V(XR+ks*4, 4)
                xa = XR+ks*4
                e.I('v_mov_b32', 'v9', V(xa)); e.I('v_mov_b32', 'v10', V(xa+1))
                e.I('v_cndmask_b32', V(xa), V(xa), V(xa+2), 's[94:95]'); e.I('v_cndmask_b32', V(xa+1), V(xa+1), V(xa+3), 's[94:95]')
                e.I('v_cndmask_b32', V(xa+2), V(xa+2), 'v9', 's[94:95]'); e.I('v_cndmask_b32', V(xa+3), V(xa+3), 'v10', 's[94:95]')
                def C(i): return V(ACC+4*i, 4) if ks else '0'
                def CC(i): return V(CSR+4*i, 4) if ks else '0'
                e.I('v_mfma_f32_16x16x32_bf16', V(ACC+24, 4), V(ONES, 4), x, C(6))
                e.I('v_mfma_f32_16x16x32_bf16', V(ACC+28, 4), x, x, C(7))
                if pend: pend.pop(0)()
                for t in range(4):
                    e.I('v_mfma_f32_16x16x32_bf16', V(ACC+4*t, 4), V(buf+4*t, 4), x, C(t))
                    e.I('v_mfma_f32_16x16x32_bf16', V(CSR+4*t, 4), V(buf+4*t, 4), V(ONES, 4), CC(t))
                    if t == 1 and pend: pend.pop(0)()
                for t in range(4, 6):
                    e.I('v_mfma_f32_16x16x32_bf16', V(ACC+4*t, 4), x, V(buf+4*t, 4), C(t))
                    e.I('v_mfma_f32_16x16x32_bf16', V(CSR+4*t, 4), V(ONES, 4), V(buf+4*t, 4), CC(t))
                if ks == k0:
                    while pend: pend.pop(0)()
                    if gi+PRE < len(groups): marks[gi+PRE] = e.vmc
        for ft in range(2):
            for q in range(4):
                e.I('v_lshl_or_b32', V(WPH+4*ft+q), V(WG_+8*ft+2*q+1), 16, V(WG_+8*ft+2*q))
    else:
        XR = 16
        e.I('s_mul_i32', 's26', 's23', 14336)
        e.I('s_add_u32', 's26', 's26', XIN)
        e.I('s_mul_i32', 's24', 's22', 86016)
        e.I('s_lshl_b32', 's25', 's20', 10)
        e.I('s_add_u32', 's24', 's24', 's25')
        e.I('s_add_u32', 's24', 's24', WQKV_P)
        def dma(j):
            e.I('s_add_u32', 's28', 's25', j*8192)
            e.I('s_mov_b32', 'm0', 's28')
            if j == 10:
                e.I('s_min_u32', 's27', 's20', 3); e.I('s_lshl_b32', 's27', 's27', 10)
                e.I('s_sub_u32', 's27', 's27', 's25'); e.I('s_add_u32', 's27', 's27', 's24'); e.I('s_add_u32', 's27', 's27', j*8192)
            else:
                e.I('s_add_u32', 's27', 's24', j*8192)
            e.I('buffer_load_dwordx4', 'v5', 's[8:11]', 's27', mods='offen lds')
        marks = {}
        def group_ops(grp):
            ops = []
            for j in range(3*grp, min(3*grp+3, 11)):
                ops.append(lambda j=j: dma(j))
            for ks in range(4*grp, min(4*grp+4, 14)):
                def xl(ks=ks):
                    e.I('s_add_u32', 's29', 's26', (ks//4)*4096)
                    e.I('buffer_load_dwordx4', V(XR+ks*4, 4), 'v5', 's[8:11]', 's29', mods='offen offset:%d' % ((ks % 4)*1024))
                ops.append(xl)
            return ops
        e.I('v_mov_b32', 'v15', 0)
        e.I('s_lshl_b32', 's31', 's22', 2)
        e.I('s_or_b32', 's56', 's20', 's21')
        e.I('s_cmp_lg_u32', 's56', 0); e.I('s_cbranch_scc1', 'L_noclaim_%s' % name)
        for i in range(4): e.I('v_mov_b32', V(120+i), 0)
        e.I('s_lshl_b32', 's27', 's22', 13); e.I('s_add_u32', 's27', 's27', KV)
        for i in range(8):
            if i == 4: e.I('s_add_u32', 's27', 's27', 4096)
            e.I('buffer_store_dwordx4', V(120, 4), 'v5', 's[8:11]', 's27', mods='offen offset:%d sc1' % ((i % 4)*1024))
        e.label('L_noclaim_%s' % name)
        e.vm = []; e.vmc = 0
        for grp in range(2):
            for op in group_ops(grp): op()
            marks[grp] = e.vmc
        CSR = 156; CSV = 172; WPH = 216
        def small_ops():
            ops = []
            def a0():
                e.I('s_mul_i32', 's30', 's22', 384); e.I('s_add_u32', 's30', 's30', CSQKV)
                for t in range(4):
                    e.I('buffer_load_dwordx4', V(CSR+4*t, 4), 'v6', 's[8:11]', 's30', mods='offen offset:%d' % (t*64))
            def a1():
                for t in range(2):
                    e.I('buffer_load_dword', V(CSV+4*t), 'v7', 's[8:11]', 's30', mods='offen offset:%d' % (256+t*64))
                e.I('s_lshl_b32', 's30', 's22', 11); e.I('s_add_u32', 's30', 's30', WPHI_P)
                for ft in range(2):
                    e.I('buffer_load_dwordx4', V(WPH+4*ft, 4), 'v5', 's[8:11]', 's30', mods='offen offset:%d' % (ft*1024))
            return [a0, a1]
        e.I('v_lshlrev_b32', 'v6', 4, 'v4')
        e.I('v_lshlrev_b32', 'v7', 2, 'v3')
        ONES = 152
        for i in range(4): e.I('v_mov_b32', V(ONES+i), 0x3f803f80)
        masks = diag_masks(e, 40)
        e.I('v_cmp_eq_u32', 's[48:49]', 3, 'v4')
        e.I('v_cmp_eq_u32', 's[50:51]', 12, 'v3')
        e.I('v_cmp_le_u32', 's[52:53]', 12, 'v3')
        e.I('v_add_u32', 'v8', 0x10000, 'v5')
        stamp(e, 1)
        BR = 72; ACC = 120
        def bread(ks):
            buf = BR + (ks & 1)*24
            for t in range(6):
                off = (ks*6+t)*1024
                if off < 65536: e.I('ds_read_b128', V(buf+4*t, 4), 'v5', mods='offset:%d' % off)
                else: e.I('ds_read_b128', V(buf+4*t, 4), 'v8', mods='offset:%d' % (off-65536))
        e.wait_mark(marks[0])
        e.barrier()
        stamp(e, 2)
        st_ = e.save()
        e.I('s_cmp_lg_u32', 's56', 0); e.I('s_cbranch_scc1', 'L_nozero_%s' % name)
        e.I('s_mov_b64', 's[54:55]', 'exec')
        e.I('s_mov_b64', 'exec', 1)
        e.I('v_mov_b32', 'v14', 1)
        e.I('buffer_store_dword', 'v14', 'v15', 's[16:19]', 's31', mods='offen offset:64 sc1')
        e.I('s_mov_b64', 'exec', 's[54:55]')
        e.label('L_nozero_%s' % name)
        e.restore(st_)
        bread(0)
        for grp in range(4):
            kss = list(range(4*grp, min(4*grp+4, 14)))
            pend = group_ops(grp+2) if grp+2 < 4 else (small_ops() if grp == 2 else [])
            for ks in kss:
                if ks == kss[-1] and grp+1 < 4:
                    e.wait_mark(marks[grp+1])
                    e.barrier()
                if ks+1 < 14: bread(ks+1)
                buf = BR + (ks & 1)*24
                x = V(XR+ks*4, 4)
                def C(i): return V(ACC+4*i, 4) if ks else '0'
                e.I('v_mfma_f32_16x16x32_bf16', V(ACC+24, 4), V(ONES, 4), x, C(6))
                e.I('v_mfma_f32_16x16x32_bf16', V(ACC+28, 4), x, x, C(7))
                if pend: pend.pop(0)()
                for t in range(4):
                    e.I('v_mfma_f32_16x16x32_bf16', V(ACC+4*t, 4), V(buf+4*t, 4), x, C(t))
                    if t == 1 and pend: pend.pop(0)()
                for t in range(4, 6):
                    e.I('v_mfma_f32_16x16x32_bf16', V(ACC+4*t, 4), x, V(buf+4*t, 4), C(t))
                if ks == kss[-2]:
                    while pend: pend.pop(0)()
                    if grp+2 < 4: marks[grp+2] = e.vmc
    CSR = 156; CSV = 172; WPH = 216; BR = 72; ACC = 120
    T = 184
    stamp(e, 3)
    e.I('buffer_load_dword', 'v14', 'v15', 's[16:19]', 's31', mods='offen offset:64 sc1')
    vNM, vRS = V(T), V(T+1)
    ln_stats(e, ACC+24, ACC+28, vNM, vRS, V(T+2), V(T+3), masks)
    STAT = 0x18800
    e.I('s_lshl_b32', 's26', 's20', 7)
    e.I('s_add_u32', 's26', 's26', STAT)
    e.I('v_lshl_add_u32', 'v9', 'v3', 3, 's26')
    e.I('v_lshl_add_u32', 'v10', 'v4', 5, 's26')
    e.I('ds_write_b64', 'v9', V(T, 2))
    e.waitcnt(lg=0)
    e.I('ds_read_b128', V(T+4, 4), 'v10')
    e.I('ds_read_b128', V(T+8, 4), 'v10', mods='offset:16')
    QF = T+12; KF = T+16; TT = T+20
    for (t0, FR) in ((0, QF), (2, KF)):
        for t in range(2):
            for r in range(4):
                e.I('v_mul_f32', V(TT+4*t+r), vNM, V(CSR+4*(t0+t)+r))
            for r in range(4):
                e.I('v_fmac_f32', V(TT+4*t+r), V(ACC+4*(t0+t)+r), vRS)
            e.I('v_cvt_pk_bf16_f32', V(FR+2*t), V(TT+4*t), V(TT+4*t+1))
            e.I('v_cvt_pk_bf16_f32', V(FR+2*t+1), V(TT+4*t+2), V(TT+4*t+3))
    PQ = ACC; PK = ACC+8
    e.I('v_mfma_f32_16x16x32_bf16', V(PK, 4), V(KF, 4), V(WPH, 4), '0')
    e.I('v_mfma_f32_16x16x32_bf16', V(PK+4, 4), V(KF, 4), V(WPH+4, 4), '0')
    e.I('v_mfma_f32_16x16x32_bf16', V(PQ, 4), V(WPH, 4), V(QF, 4), '0')
    e.I('v_mfma_f32_16x16x32_bf16', V(PQ+4, 4), V(WPH+4, 4), V(QF, 4), '0')
    VF = T+28
    for t in range(2):
        for r in range(4):
            nm = V(T+4+2*r); rs = V(T+5+2*r)
            e.I('v_mul_f32', V(TT+4*t+r), nm, V(CSV+4*t))
            e.I('v_fmac_f32', V(TT+4*t+r), V(ACC+16+4*t+r), rs)
            if t == 1:
                e.I('v_cndmask_b32', V(TT+4+r), V(TT+4+r), 1.0, 's[50:51]')
        e.I('v_cvt_pk_bf16_f32', V(VF+2*t), V(TT+4*t), V(TT+4*t+1))
        e.I('v_cvt_pk_bf16_f32', V(VF+2*t+1), V(TT+4*t+2), V(TT+4*t+3))
    A = T+32
    e.I('v_mov_b32', V(A+8), 0xff7fffff); e.I('v_mov_b32', V(A+9), 0x7f7fffff)
    EP = [V(A+16+i) for i in range(8)]; EN = [V(A+24+i) for i in range(8)]
    e.I('s_mov_b32', 's26', LOG2E)
    Kp = [V(PK+i) for i in range(8)]
    bf16_roundtrip(e, Kp, A+32)
    KM = [V(A+i) for i in range(4)]; KN = [V(A+4+i) for i in range(4)]
    MX = [V(A+32+i) for i in range(4)]; MN = [V(A+36+i) for i in range(4)]
    for r in range(4):
        e.I('v_cndmask_b32', KM[r], Kp[4+r], V(A+8), 's[52:53]')
        e.I('v_cndmask_b32', KN[r], Kp[4+r], V(A+9), 's[52:53]')
    for r in range(4):
        e.I('v_max_f32', MX[r], Kp[r], KM[r]); e.I('v_min_f32', MN[r], Kp[r], KN[r])
    for sh in (8, 4, 2, 1):
        for r in range(4):
            e.I('v_max_f32_dpp', MX[r], MX[r], MX[r], mods='row_ror:%d row_mask:0xf bank_mask:0xf' % sh)
            e.I('v_min_f32_dpp', MN[r], MN[r], MN[r], mods='row_ror:%d row_mask:0xf bank_mask:0xf' % sh)
    for r in range(4):
        e.I('v_mul_f32', MX[r], LOG2E, MX[r]); e.I('v_mul_f32', MN[r], LOG2E, MN[r])
    for i in range(8):
        r = i & 3
        sp = Kp[i] if i < 4 else KM[r]; sn = Kp[i] if i < 4 else KN[r]
        e.I('v_fma_f32', EP[i], sp, 's26', '-' + MX[r])
        e.I('v_fma_f32', EN[i], '-' + sn, 's26', MN[r])
    for i in range(8):
        e.I('v_exp_f32', EP[i], EP[i]); e.I('v_exp_f32', EN[i], EN[i])
    for r in range(4):
        e.I('v_add_f32', MX[r], EP[r], EP[4+r]); e.I('v_add_f32', MN[r], EN[r], EN[4+r])
    for sh in (8, 4, 2, 1):
        for r in range(4):
            e.I('v_add_f32_dpp', MX[r], MX[r], MX[r], mods='row_ror:%d row_mask:0xf bank_mask:0xf' % sh)
            e.I('v_add_f32_dpp', MN[r], MN[r], MN[r], mods='row_ror:%d row_mask:0xf bank_mask:0xf' % sh)
    for r in range(4):
        e.I('v_rcp_f32', MX[r], MX[r]); e.I('v_rcp_f32', MN[r], MN[r])
    for i in range(8):
        e.I('v_mul_f32', EP[i], EP[i], MX[i & 3]); e.I('v_mul_f32', EN[i], EN[i], MN[i & 3])
    PF = BR
    for ft in range(2):
        e.I('v_cvt_pk_bf16_f32', V(PF+2*ft), EP[4*ft], EP[4*ft+1])
        e.I('v_cvt_pk_bf16_f32', V(PF+2*ft+1), EP[4*ft+2], EP[4*ft+3])
        e.I('v_cvt_pk_bf16_f32', V(PF+4+2*ft), EN[4*ft], EN[4*ft+1])
        e.I('v_cvt_pk_bf16_f32', V(PF+4+2*ft+1), EN[4*ft+2], EN[4*ft+3])
    XCH = 0x18C00
    e.I('s_mul_i32', 's27', 's20', 3072); e.I('s_add_u32', 's27', 's27', XCH)
    e.I('v_lshl_add_u32', 'v9', 'v1', 3, 's27')
    for f in range(4):
        e.I('ds_write_b64', 'v9', V(PF+2*f, 2), mods='offset:%d' % (f*512))
    for dt in range(2):
        e.I('ds_write_b64', 'v9', V(VF+2*dt, 2), mods='offset:%d' % (2048+dt*512))
    P = [V(PQ+i) for i in range(8)]
    bf16_roundtrip(e, P, TT)
    PM = [V(A+i) for i in range(4)]; PN = [V(A+4+i) for i in range(4)]
    for r in range(4):
        e.I('v_cndmask_b32', PM[r], P[4+r], V(A+8), 's[48:49]')
        e.I('v_cndmask_b32', PN[r], P[4+r], V(A+9), 's[48:49]')
    mx, mn, tmp, tmp2 = V(A+10), V(A+11), V(A+12), V(A+15)
    e.I('v_max3_f32', mx, P[0], P[1], P[2]); e.I('v_min3_f32', mn, P[0], P[1], P[2])
    e.I('v_max3_f32', mx, mx, P[3], PM[0]); e.I('v_min3_f32', mn, mn, P[3], PN[0])
    e.I('v_max3_f32', mx, mx, PM[1], PM[2]); e.I('v_min3_f32', mn, mn, PN[1], PN[2])
    e.I('v_max_f32', mx, mx, PM[3]); e.I('v_min_f32', mn, mn, PN[3])
    e.waitcnt(lg=0)
    e.barrier()
    e.I('s_and_b32', 's27', 's20', 3); e.I('s_lshl_b32', 's27', 's27', 9)
    e.I('s_lshr_b32', 's28', 's20', 2); e.I('s_lshl_b32', 's28', 's28', 9); e.I('s_add_u32', 's28', 's28', 2048)
    e.I('s_add_u32', 's27', 's27', XCH); e.I('s_add_u32', 's28', 's28', XCH)
    e.I('v_lshl_add_u32', 'v9', 'v1', 3, 's27'); e.I('v_lshl_add_u32', 'v10', 'v1', 3, 's28')
    KA = BR+16; KB = BR+32
    for w in range(8):
        e.I('ds_read_b64', V(KA+2*w, 2), 'v9', mods='offset:%d' % (w*3072))
        e.I('ds_read_b64', V(KB+2*w, 2), 'v10', mods='offset:%d' % (w*3072))
    KVR = BR
    for w in range(8):
        e.I('v_mfma_f32_16x16x16_bf16', V(KVR, 4), V(KA+2*w, 2), V(KB+2*w, 2), V(KVR, 4) if w else '0')
    xreduce2 = [(mx, 'v_max_f32', tmp), (mn, 'v_min_f32', tmp2)]
    for sw in ('v_permlane16_swap_b32', 'v_permlane32_swap_b32'):
        for (v, op, t_) in xreduce2: e.I('v_mov_b32', t_, v)
        for (v, op, t_) in xreduce2: e.I(sw, v, t_)
        for (v, op, t_) in xreduce2: e.I(op, v, v, t_)
    e.I('s_lshl_b32', 's27', 's22', 13); e.I('s_lshl_b32', 's28', 's20', 10)
    e.I('s_add_u32', 's27', 's27', 's28'); e.I('s_add_u32', 's27', 's27', KV)
    e.I('v_lshlrev_b32', 'v9', 2, 'v1')
    stamp(e, 4)
    e.I('v_readfirstlane_b32', 's28', 'v14')
    st_ = e.save()
    e.I('s_cmp_lg_u32', 's28', 0); e.I('s_cbranch_scc1', 'L_flagok_%s' % name)
    e.label('L_spin_%s' % name)
    e.I('s_sleep', 2)
    e.I('buffer_load_dword', 'v14', 'v15', 's[16:19]', 's31', mods='offen offset:64 sc1')
    e.wait_all()
    e.I('v_readfirstlane_b32', 's28', 'v14')
    e.I('s_cmp_eq_u32', 's28', 0); e.I('s_cbranch_scc1', 'L_spin_%s' % name)
    e.label('L_flagok_%s' % name)
    e.restore(st_)
    for r in range(4):
        e.I('buffer_atomic_add_f32', V(KVR+r), 'v9', 's[8:11]', 's27', mods='offen offset:%d' % (r*256))
    e.I('v_mul_f32', mx, LOG2E, mx); e.I('v_mul_f32', mn, LOG2E, mn)
    for i in range(8):
        sp = P[i] if i < 4 else PM[i-4]; sn = P[i] if i < 4 else PN[i-4]
        e.I('v_fma_f32', EP[i], sp, 's26', '-' + mx)
        e.I('v_fma_f32', EN[i], '-' + sn, 's26', mn)
    for i in range(8):
        e.I('v_exp_f32', EP[i], EP[i]); e.I('v_exp_f32', EN[i], EN[i])
    sp_, sn_ = V(A+13), V(A+14)
    e.I('v_add_f32', sp_, EP[0], EP[1]); e.I('v_add_f32', sn_, EN[0], EN[1])
    for i in range(2, 8):
        e.I('v_add_f32', sp_, sp_, EP[i]); e.I('v_add_f32', sn_, sn_, EN[i])
    xreduce2 = [(sp_, 'v_add_f32', tmp), (sn_, 'v_add_f32', tmp2)]
    for sw in ('v_permlane16_swap_b32', 'v_permlane32_swap_b32'):
        for (v, op, t_) in xreduce2: e.I('v_mov_b32', t_, v)
        for (v, op, t_) in xreduce2: e.I(sw, v, t_)
        for (v, op, t_) in xreduce2: e.I(op, v, v, t_)
    e.I('v_rcp_f32', sp_, sp_); e.I('v_rcp_f32', sn_, sn_)
    for i in range(8):
        e.I('v_mul_f32', EP[i], EP[i], sp_); e.I('v_mul_f32', EN[i], EN[i], sn_)
    OQ = TT
    for i in range(4):
        e.I('v_cvt_pk_bf16_f32', V(OQ+i), EP[2*i], EP[2*i+1])
        e.I('v_cvt_pk_bf16_f32', V(OQ+4+i), EN[2*i], EN[2*i+1])
    e.I('s_lshl_b32', 's27', 's23', 4); e.I('s_add_u32', 's27', 's27', 's22')
    e.I('s_lshl_b32', 's27', 's27', 11); e.I('s_add_u32', 's27', 's27', PHIQ)
    e.I('buffer_store_dwordx4', V(OQ, 4), 'v5', 's[8:11]', 's27', mods='offen')
    e.I('buffer_store_dwordx4', V(OQ+4, 4), 'v5', 's[8:11]', 's27', mods='offen offset:1024')
    stamp(e, 5);
    if STAMPS: e.wait_all()
    stamp(e, 6); dump_stamps(e, 7)
    finish(e, name, 256, 512, 0x18C00 + 8*3072)

def reduce_epilogue(e, ACC, XIN, XOUT, bias_srd, final_srd, raw_srd=None):
    RX = 200; RB = 204
    e.I('s_lshr_b32', 's26', 's20', 1)
    e.I('s_and_b32', 's27', 's20', 1)
    e.I('s_lshl_b32', 's28', 's21', 2); e.I('s_add_u32', 's28', 's28', 's26')
    e.I('s_lshl_b32', 's29', 's22', 1); e.I('s_add_u32', 's29', 's29', 's27')
    e.I('s_mul_i32', 's30', 's28', 14336); e.I('s_lshl_b32', 's31', 's29', 10)
    e.I('s_add_u32', 's30', 's30', 's31')
    if raw_srd is None:
        e.I('s_add_u32', 's31', 's30', XIN)
        e.I('buffer_load_dwordx4', V(RX, 4), 'v5', 's[8:11]', 's31', mods='offen')
    else:
        e.I('v_mul_u32_u24', 'v6', 896, 'v3'); e.I('v_lshl_add_u32', 'v6', 'v4', 3, 'v6')
        e.I('s_mul_i32', 's31', 's28', 16*896); e.I('s_lshl_b32', 's26', 's29', 6); e.I('s_add_u32', 's31', 's31', 's26')
        e.I('s_lshr_b32', 's26', 's20', 1)
        e.I('buffer_load_dwordx2', V(RX, 2), 'v6', Sg(raw_srd, 4), 's31', mods='offen')
        e.I('buffer_load_dwordx2', V(RX+2, 2), 'v6', Sg(raw_srd, 4), 's31', mods='offen offset:32')
    if bias_srd is not None:
        e.I('v_lshlrev_b32', 'v6', 3, 'v4')
        e.I('s_lshl_b32', 's31', 's29', 6)
        e.I('buffer_load_dwordx2', V(RB, 2), 'v6', Sg(bias_srd, 4), 's31', mods='offen')
        e.I('buffer_load_dwordx2', V(RB+2, 2), 'v6', Sg(bias_srd, 4), 's31', mods='offen offset:32')
    e.I('s_lshl_b32', 's31', 's20', 14)
    e.I('v_add_u32', 'v9', 's31', 'v5')
    for i in range(16):
        e.I('ds_write_b128', 'v9', V(ACC+4*i, 4), mods='offset:%d' % (i*1024))
    e.waitcnt(lg=0)
    stamp(e, 5)
    e.barrier()
    stamp(e, 6)
    e.I('s_lshl_b32', 's31', 's26', 12); e.I('s_lshl_b32', 's26', 's27', 11); e.I('s_add_u32', 's31', 's31', 's26')
    e.I('v_add_u32', 'v9', 's31', 'v5')
    e.I('v_add_u32', 'v10', 0x10000, 'v9')
    R = 16
    for w in range(8):
        a, o = ('v9', w*16384) if w < 4 else ('v10', (w-4)*16384)
        e.I('ds_read_b128', V(R+8*w, 4), a, mods='offset:%d' % o)
        e.I('ds_read_b128', V(R+8*w+4, 4), a, mods='offset:%d' % (o+1024))
    for w in range(1, 8):
        for r in range(8):
            e.I('v_add_f32', V(R+r), V(R+r), V(R+8*w+r))
    Sm = [V(R+r) for r in range(8)]
    T = R+8
    bf16_roundtrip(e, Sm, T)
    if bias_srd is not None:
        for q in range(4):
            e.I('v_lshlrev_b32', V(T+2*q), 16, V(RB+q)); e.I('v_and_b32', V(T+2*q+1), 0xffff0000, V(RB+q))
        for r in range(8): e.I('v_add_f32', Sm[r], Sm[r], V(T+r))
        bf16_roundtrip(e, Sm, T)
    for q in range(4):
        e.I('v_lshlrev_b32', V(T+2*q), 16, V(RX+q)); e.I('v_and_b32', V(T+2*q+1), 0xffff0000, V(RX+q))
    for r in range(8): e.I('v_add_f32', Sm[r], Sm[r], V(T+r))
    for q in range(4):
        e.I('v_cvt_pk_bf16_f32', V(T+8+q), Sm[2*q], Sm[2*q+1])
    if final_srd is None:
        e.I('s_add_u32', 's31', 's30', XOUT)
        e.I('buffer_store_dwordx4', V(T+8, 4), 'v5', 's[8:11]', 's31', mods='offen')
    else:
        e.I('v_mul_u32_u24', 'v6', 896, 'v3')
        e.I('v_lshl_add_u32', 'v6', 'v4', 3, 'v6')
        e.I('s_mul_i32', 's31', 's28', 16*896); e.I('s_lshl_b32', 's26', 's29', 6); e.I('s_add_u32', 's31', 's31', 's26')
        e.I('buffer_store_dwordx2', V(T+8, 2), 'v6', Sg(final_srd, 4), 's31', mods='offen')
        e.I('buffer_store_dwordx2', V(T+10, 2), 'v6', Sg(final_srd, 4), 's31', mods='offen offset:32')

def split_wg_64(e):
    e.I('s_and_b32', 's26', 's2', 7); e.I('s_lshr_b32', 's27', 's2', 3)
    e.I('s_mul_i32', 's28', 's27', 37); e.I('s_lshr_b32', 's28', 's28', 8)
    e.I('s_mul_i32', 's22', 's28', 7); e.I('s_sub_u32', 's22', 's27', 's22')
    e.I('s_lshl_b32', 's21', 's26', 2); e.I('s_add_u32', 's21', 's21', 's28')

def gen_k2(name, XIN, XOUT, KV, first):
    e = Emitter(); e.name = name
    NWG = 252 if first else 224
    prologue(e, NWG, [(0, 12, S*D*2)] if first else [])
    if first:
        e.I('s_cmp_ge_u32', 's2', 224); e.I('s_cbranch_scc1', 'L_prep_%s' % name)
    split_wg_64(e)
    e.stampbase = 0x1E00000 + 0x8000*1 + (0x40000 if name.startswith('k2b') else 0); stamp(e, 0)
    e.I('v_lshlrev_b32', 'v7', 2, 'v1')
    e.I('v_cmp_eq_u32', 's[48:49]', 3, 'v4')
    ACC = 64
    KVF = 128
    PQ = 192
    WOF = 16
    NUM = 48
    for hh in range(2):
        e.I('s_lshl_b32', 's26', 's20', 1); e.I('s_add_u32', 's26', 's26', hh)
        e.I('s_lshl_b32', 's27', 's26', 13); e.I('s_add_u32', 's27', 's27', KV)
        for i in range(32):
            if i == 16: e.I('s_add_u32', 's27', 's27', 4096)
            e.I('buffer_load_dword', V(KVF+32*hh+i), 'v7', 's[8:11]', 's27', mods='offen offset:%d' % ((i % 16)*256))
        e.I('s_lshl_b32', 's27', 's21', 2+4+11)
        e.I('s_lshl_b32', 's28', 's26', 11); e.I('s_add_u32', 's27', 's27', 's28'); e.I('s_add_u32', 's27', 's27', PHIQ)
        for tt in range(4):
            if tt: e.I('s_add_u32', 's27', 's27', 32768)
            for ks in range(2):
                e.I('buffer_load_dwordx4', V(PQ+32*hh+8*tt+4*ks, 4), 'v5', 's[8:11]', 's27', mods='offen offset:%d' % (ks*1024))
        e.I('s_lshl_b32', 's27', 's22', 2+14)
        e.I('s_lshl_b32', 's28', 's26', 10); e.I('s_add_u32', 's27', 's27', 's28'); e.I('s_add_u32', 's27', 's27', WO_P)
        for nt in range(4):
            if nt: e.I('s_add_u32', 's27', 's27', 16384)
            e.I('buffer_load_dwordx4', V(WOF+16*hh+4*nt, 4), 'v5', 's[8:11]', 's27', mods='offen')
    stamp(e, 1)
    for hh in range(2):
        kb = KVF+32*hh
        for fr in range(4):
            for q in range(4):
                e.I('v_cvt_pk_bf16_f32', V(kb+4*fr+q), V(kb+8*fr+2*q), V(kb+8*fr+2*q+1))
        for half in range(2):
            for t2 in range(2):
                tt = 2*half+t2
                for dt in range(2):
                    for ks in range(2):
                        d = V(NUM+8*t2+4*dt, 4)
                        e.I('v_mfma_f32_16x16x32_bf16', d, V(kb+4*(dt*2+ks), 4), V(PQ+32*hh+8*tt+4*ks, 4), d if ks else '0')
            OF = kb+16
            TMP = kb+24
            for t2 in range(2):
                N = [V(NUM+8*t2+i) for i in range(8)]
                bf16_roundtrip(e, N, TMP)
                den = V(TMP+4); t1 = V(TMP+5)
                e.I('v_cndmask_b32', den, 0, N[4], 's[48:49]')
                xreduce(e, 'v_add_f32', den, t1)
                e.I('v_add_f32', den, 0x358637bd, den)
                e.I('v_cvt_pk_bf16_f32', den, den, den)
                e.I('v_lshlrev_b32', den, 16, den)
                e.I('v_rcp_f32', den, den)
                for i in range(8): e.I('v_mul_f32', N[i], N[i], den)
                for q in range(4):
                    e.I('v_cvt_pk_bf16_f32', V(OF+4*t2+q), N[2*q], N[2*q+1])
            for t2 in range(2):
                tt = 2*half+t2
                for nt in range(4):
                    d = V(ACC+4*(tt*4+nt), 4)
                    e.I('v_mfma_f32_16x16x32_bf16', d, V(WOF+16*hh+4*nt, 4), V(OF+4*t2, 4), d if hh else '0')
    if STAMPS: e.I('s_nop', 7); e.I('s_nop', 7)
    stamp(e, 2)
    reduce_epilogue(e, ACC, XIN, XOUT, None, None, 12 if first else None)
    stamp(e, 3)
    if STAMPS: e.wait_all()
    stamp(e, 4); dump_stamps(e, 7)
    if first:
        e.I('s_branch', 'L_end_%s' % name)
        prep_section(e, name, ['w1', 'w2'], 224)
    finish(e, name, NWG, 512, 0x20000)

def gen_k3(name, XIN):
    e = Emitter(); e.name = name
    prologue(e, 224, [(48, 12, F*2)])
    e.stampbase = 0x1E00000 + 0x8000*2 + (0x40000 if name.startswith('k3b') else 0); stamp(e, 0)
    e.I('s_and_b32', 's26', 's2', 7); e.I('s_lshr_b32', 's27', 's2', 3)
    e.I('s_mul_i32', 's28', 's27', 37); e.I('s_lshr_b32', 's28', 's28', 8)
    e.I('s_mul_i32', 's29', 's28', 7); e.I('s_sub_u32', 's29', 's27', 's29')
    e.I('s_lshr_b32', 's21', 's26', 1); e.I('s_lshl_b32', 's21', 's21', 2); e.I('s_add_u32', 's21', 's21', 's28')
    e.I('s_and_b32', 's22', 's26', 1); e.I('s_mul_i32', 's22', 's22', 7); e.I('s_add_u32', 's22', 's22', 's29')
    e.I('s_lshl_b32', 's23', 's21', 3)
    e.I('s_add_u32', 's23', 's23', 's20')
    e.I('s_mul_i32', 's24', 's22', 14*8192)
    e.I('s_lshl_b32', 's25', 's20', 10)
    e.I('s_add_u32', 's24', 's24', 's25')
    e.I('s_add_u32', 's24', 's24', W1_P)
    XR = 16
    e.I('s_mul_i32', 's26', 's23', 14336)
    e.I('s_add_u32', 's26', 's26', XIN)
    groups = [(2*i, 2*i+2) for i in range(7)]
    PRE = 3
    marks = {}
    def group_ops(gi):
        ops = []
        for ks in range(*groups[gi]):
            def d(ks=ks):
                e.I('s_add_u32', 's28', 's25', ks*8192)
                e.I('s_mov_b32', 'm0', 's28')
                e.I('s_add_u32', 's27', 's24', ks*8192)
                e.I('buffer_load_dwordx4', 'v5', 's[8:11]', 's27', mods='offen lds')
            def xl(ks=ks):
                e.I('s_add_u32', 's29', 's26', (ks//4)*4096)
                e.I('buffer_load_dwordx4', V(XR+ks*4, 4), 'v5', 's[8:11]', 's29', mods='offen offset:%d' % ((ks % 4)*1024))
            ops += [d, xl]
        return ops
    for gi in range(PRE):
        for op in group_ops(gi): op()
        marks[gi] = e.vmc
    CSR = 180; B1R = 212
    e.I('v_lshlrev_b32', 'v6', 4, 'v4')
    e.I('v_lshlrev_b32', 'v7', 3, 'v4')
    e.I('s_lshl_b32', 's30', 's22', 9); e.I('s_add_u32', 's30', 's30', CS1)
    e.I('s_lshl_b32', 's31', 's22', 8)
    def small_ops(half):
        ops = []
        for t in range(4*half, 4*half+4):
            def a(t=t):
                e.I('buffer_load_dwordx4', V(CSR+4*t, 4), 'v6', 's[8:11]', 's30', mods='offen offset:%d' % (t*64))
                e.I('buffer_load_dwordx2', V(B1R+2*t, 2), 'v7', 's[12:15]', 's31', mods='offen offset:%d' % (t*32))
            ops.append(a)
        return ops
    ONES = 176
    for i in range(4): e.I('v_mov_b32', V(ONES+i), 0x3f803f80)
    masks = diag_masks(e, 40)
    e.I('v_add_u32', 'v8', 0x10000, 'v5')
    stamp(e, 1)
    BR = 72; ACC = 136
    def bread(ks):
        buf = BR + (ks & 1)*32
        for t in range(8):
            off = (ks*8+t)*1024
            if off < 65536: e.I('ds_read_b128', V(buf+4*t, 4), 'v5', mods='offset:%d' % off)
            else: e.I('ds_read_b128', V(buf+4*t, 4), 'v8', mods='offset:%d' % (off-65536))
    e.wait_mark(marks[0])
    e.barrier()
    stamp(e, 2)
    bread(0)
    for gi, (k0, k1) in enumerate(groups):
        if gi+PRE < len(groups): pend = group_ops(gi+PRE)
        elif gi+PRE-len(groups) < 2: pend = small_ops(gi+PRE-len(groups))
        else: pend = []
        for ks in range(k0, k1):
            if ks+1 == k1 and gi+1 < len(groups):
                e.wait_mark(marks[gi+1])
                e.barrier()
            if ks+1 < 14: bread(ks+1)
            buf = BR + (ks & 1)*32
            x = V(XR+ks*4, 4)
            def C(i): return V(ACC+4*i, 4) if ks else '0'
            e.I('v_mfma_f32_16x16x32_bf16', V(ACC+32, 4), V(ONES, 4), x, C(8))
            e.I('v_mfma_f32_16x16x32_bf16', V(ACC+36, 4), x, x, C(9))
            if pend: pend.pop(0)()
            for t in range(8):
                e.I('v_mfma_f32_16x16x32_bf16', V(ACC+4*t, 4), V(buf+4*t, 4), x, C(t))
                if t == 3 and pend: pend.pop(0)()
            if ks == k0:
                while pend: pend.pop(0)()
                if gi+PRE < len(groups): marks[gi+PRE] = e.vmc
    T = 228
    stamp(e, 3)
    vNM, vRS = V(T), V(T+1)
    ln_stats(e, ACC+32, ACC+36, vNM, vRS, V(T+2), V(T+3), masks)
    e.I('s_mul_i32', 's26', 's23', 56*1024); e.I('s_lshl_b32', 's27', 's22', 12)
    e.I('s_add_u32', 's26', 's26', 's27'); e.I('s_add_u32', 's26', 's26', HF)
    e.I('s_mov_b32', 's34', 0x3d372713)
    e.I('s_mov_b32', 's35', 0xc0135761)
    W = 16
    for p in range(4):
        Hh = [V(W+16*(p % 2)+r) for r in range(8)]
        U = [V(W+16*(p % 2)+8+r) for r in range(8)]
        for r in range(8): e.I('v_mul_f32', Hh[r], vNM, V(CSR+8*p+r))
        for r in range(8): e.I('v_fmac_f32', Hh[r], V(ACC+8*p+r), vRS)
        bf16_roundtrip(e, Hh, T+4)
        for q in range(4):
            e.I('v_lshlrev_b32', U[2*q], 16, V(B1R+4*p+q)); e.I('v_and_b32', U[2*q+1], 0xffff0000, V(B1R+4*p+q))
        for r in range(8): e.I('v_add_f32', Hh[r], Hh[r], U[r])
        bf16_roundtrip(e, Hh, T+4)
        for r in range(8): e.I('v_mul_f32', U[r], Hh[r], Hh[r])
        for r in range(8): e.I('v_fma_f32', U[r], U[r], 's34', 1.0)
        for r in range(8): e.I('v_mul_f32', U[r], U[r], Hh[r])
        for r in range(8): e.I('v_mul_f32', U[r], 's35', U[r])
        for r in range(8): e.I('v_exp_f32', U[r], U[r])
        for r in range(8): e.I('v_add_f32', U[r], 1.0, U[r])
        for r in range(8): e.I('v_rcp_f32', U[r], U[r])
        for r in range(8): e.I('v_mul_f32', Hh[r], Hh[r], U[r])
        O = T+8+4*(p % 2)
        for q in range(4): e.I('v_cvt_pk_bf16_f32', V(O+q), Hh[2*q], Hh[2*q+1])
        e.I('buffer_store_dwordx4', V(O, 4), 'v5', 's[8:11]', 's26', mods='offen offset:%d' % (p*1024) + STMOD)
    stamp(e, 4)
    if STAMPS: e.wait_all()
    stamp(e, 5); dump_stamps(e, 6)
    finish(e, name, 224, 512, 14*8192)

def gen_k4(name, XIN, XOUT, final):
    e = Emitter(); e.name = name
    ptrs = [(64, 12, D*2)]
    if final: ptrs.append((72, 16, S*D*2))
    NWG = 224 if final else 237
    prologue(e, NWG, ptrs)
    if not final:
        e.I('s_cmp_ge_u32', 's2', 224); e.I('s_cbranch_scc1', 'L_prep_%s' % name)
    split_wg_64(e)
    e.stampbase = 0x1E00000 + 0x8000*3 + (0x40000 if name.startswith('k4b') else 0); stamp(e, 0)
    ACC = 16
    AR = 80
    BRg = 144
    e.I('s_mul_i32', 's26', 's22', 4*56*1024); e.I('s_mul_i32', 's27', 's20', 7*1024)
    e.I('s_add_u32', 's26', 's26', 's27'); e.I('s_add_u32', 's26', 's26', W2_P)
    e.I('s_mul_i32', 's28', 's21', 4*56*1024); e.I('s_add_u32', 's28', 's28', 's27'); e.I('s_add_u32', 's28', 's28', HF)
    def loads(k):
        sl = k % 4
        for i in range(4):
            e.I('s_add_u32', 's29', 's28', i*56*1024 + k*1024)
            e.I('buffer_load_dwordx4', V(BRg+16*sl+4*i, 4), 'v5', 's[8:11]', 's29', mods='offen')
            e.I('s_add_u32', 's29', 's26', i*56*1024 + k*1024)
            e.I('buffer_load_dwordx4', V(AR+16*sl+4*i, 4), 'v5', 's[8:11]', 's29', mods='offen')
    for k in range(4): loads(k)
    stamp(e, 1)
    for k in range(7):
        sl = k % 4
        for tt in range(4):
            for nt in range(4):
                d = V(ACC+4*(tt*4+nt), 4)
                e.I('v_mfma_f32_16x16x32_bf16', d, V(AR+16*sl+4*nt, 4), V(BRg+16*sl+4*tt, 4), d if k else '0')
        if k+4 < 7: loads(k+4)
    if STAMPS: e.I('s_nop', 7); e.I('s_nop', 7)
    stamp(e, 2)
    reduce_epilogue(e, ACC, XIN, XOUT, 12, 16 if final else None)
    stamp(e, 3)
    if STAMPS: e.wait_all()
    stamp(e, 4); dump_stamps(e, 7)
    if not final:
        e.I('s_branch', 'L_end_%s' % name)
        prep_section(e, name, ['wqkv', 'wphi'], 224)
    finish(e, name, NWG, 512, 0x20000)

def build():
    gen_k1('k1a_kernel', XF0, KVACC, True)
    gen_k2('k2a_kernel', XF0, XF1, KVACC, True)
    gen_k3('k3a_kernel', XF1)
    gen_k4('k4a_kernel', XF1, XF2, False)
    gen_k1('k1b_kernel', XF2, KVACC+0x20000, False)
    gen_k2('k2b_kernel', XF2, XF3, KVACC+0x20000, False)
    gen_k3('k3b_kernel', XF3)
    gen_k4('k4b_kernel', XF3, None, True)
    out = []
    hdr = open('cdna_kernels/%s.s.ref' % KNAME[:-7]).read().split('\n')
    for l in hdr:
        if l.startswith('; Override') : break
        out.append(l)
    for (name, grid, block, lds, text, mv, ms, ni) in kernels:
        out.append('; @launch kernel=%s grid=(%d,1,1) block=(%d,1,1) lds=%d' % (name, grid, block, lds))
    out.append('.amdgcn_target "amdgcn-amd-amdhsa--gfx950"')
    out.append('.text')
    for (name, grid, block, lds, text, mv, ms, ni) in kernels:
        out.append('.globl %s' % name)
        out.append('.p2align 8')
        out.append('.type %s,@function' % name)
        out.append('%s:' % name)
        out.append(text)
    out.append('.section .rodata,"a"')
    for (name, grid, block, lds, text, mv, ms, ni) in kernels:
        nv = ((mv + 1 + 7)//8)*8
        out.append('.p2align 6')
        out.append('.amdhsa_kernel %s' % name)
        out.append('  .amdhsa_next_free_vgpr %d' % nv)
        out.append('  .amdhsa_next_free_sgpr %d' % max(ms+1, 16))
        out.append('  .amdhsa_accum_offset %d' % nv)
        out.append('  .amdhsa_group_segment_fixed_size 0')
        out.append('  .amdhsa_kernarg_size 96')
        out.append('  .amdhsa_user_sgpr_count 2')
        out.append('  .amdhsa_user_sgpr_kernarg_segment_ptr 1')
        out.append('  .amdhsa_system_sgpr_workgroup_id_x 1')
        out.append('.end_amdhsa_kernel')
        sys.stderr.write('%s: %d instr, vgpr %d sgpr %d\n' % (name, ni, mv+1, ms+1))
    return '\n'.join(out) + '\n'

if __name__ == '__main__':
    if len(sys.argv) > 2: STAMPS = True
    txt = build()
    open(sys.argv[1], 'w').write(txt)
```
